```python
import torch

def _softmax(x, axis=-1):
    return torch.softmax(x, dim=axis)

def _gelu(x):
    return torch.nn.functional.gelu(x, approximate='tanh')

def _silu(x):
    return torch.nn.functional.silu(x)

def _sigmoid(x):
    return torch.sigmoid(x)

def _layernorm(x, axis=-1, eps=1e-05):
    m = x.mean(dim=axis, keepdim=True)
    v = x.var(dim=axis, keepdim=True, unbiased=False)
    return (x - m) / torch.sqrt(v + eps)

def _scatter_add(tgt, idx, src, axis=0):
    return tgt.clone().index_add_(axis, idx, src)

def _segment_sum(src, seg, n):
    out = torch.zeros((n,) + src.shape[1:], dtype=src.dtype)
    return out.index_add_(0, seg, src)

def _pad(x, pw):
    flat = tuple((v for pair in reversed(pw) for v in pair))
    return torch.nn.functional.pad(x, flat)
kernel_name = 'adaLN_cond__gqa_block_cached__dense_activation_relu__prompt'

def setup_inputs():

    _w = lambda a: (lambda t: t.to(torch.bfloat16) if t.is_floating_point() else t)(torch.as_tensor(a))

    def _A_setup():
        B, Sq, D = (1, 2048, 512)
        Hq, Hkv, Sk, Dh = (32, 8, 2048, 128)
        assert Hq % Hkv == 0, (Hq, Hkv)
        return {'x': _w((lambda *s: torch.randn(*s, dtype=torch.bfloat16) * 0.05)(B, Sq, D)), 'k_cache': _w((lambda *s: torch.randn(*s, dtype=torch.bfloat16) * 3.2)(B, Hkv, Sk, Dh)), 'v_cache': _w((lambda *s: torch.randn(*s, dtype=torch.bfloat16) * 0.4)(B, Hkv, Sk, Dh)), 'wq': _w((lambda *s: torch.randn(*s, dtype=torch.bfloat16) * 3.2)(D, Hq * Dh) * D ** (-0.5)), 'wo': _w((lambda *s: torch.randn(*s, dtype=torch.bfloat16) * 0.4)(Hq * Dh, D) * (Hq * Dh) ** (-0.5))}
    _A_in = _A_setup()

    def _B_setup():
        B, S, D, Dff = (1, 2048, 512, 1792)
        return {'x': _w((lambda *s: torch.randn(*s, dtype=torch.bfloat16) * 0.05)(B, S, D)), 'w1': _w((lambda *s: torch.randn(*s, dtype=torch.bfloat16) * 0.05)(D, Dff)), 'w2': _w((lambda *s: torch.randn(*s, dtype=torch.bfloat16) * 0.05)(Dff, D))}
    _B_in = _B_setup()
    return {'A_x': _A_in['x'], 'A_k_cache': _A_in['k_cache'], 'A_v_cache': _A_in['v_cache'], 'A_wq': _A_in['wq'], 'A_wo': _A_in['wo'], 'B_x': _B_in['x'], 'B_w1': _B_in['w1'], 'B_w2': _B_in['w2'], 'c': _w((lambda *s: torch.randn(*s, dtype=torch.bfloat16) * 0.1)(1, 512) * 8.0), 'w_mod': _w((lambda *s: torch.randn(*s, dtype=torch.bfloat16) * 0.1)(512, 6 * 512) * 512 ** (-0.5) * 8.0)}

def reference(A_x, A_k_cache, A_v_cache, A_wq, A_wo, B_x, B_w1, B_w2, c, w_mod):

    def _A_ref(x, k_cache, v_cache, wq, wo):
        B, Sq, D = x.shape
        Hq, Dh = (32, 128)
        Hkv = k_cache.shape[1]
        rep = Hq // Hkv
        q = (lambda x, *d: x.permute(*d))((x @ wq).reshape(B, Sq, Hq, Dh), 0, 2, 1, 3)
        k = (lambda x, n, axis: torch.repeat_interleave(x, n, dim=axis))(k_cache, rep, axis=1)
        v = (lambda x, n, axis: torch.repeat_interleave(x, n, dim=axis))(v_cache, rep, axis=1)
        scores = torch.einsum('bhqd,bhkd->bhqk', q, k) * Dh ** (-0.5)
        p = _softmax(scores, axis=-1)
        o = torch.einsum('bhqk,bhkd->bhqd', p, v)
        return (lambda x, *d: x.permute(*d))(o, 0, 2, 1, 3).reshape(B, Sq, Hq * Dh) @ wo

    def _B_ref(x, w1, w2):
        h = torch.einsum('bsd,df->bsf', x, w1)
        zero = torch.zeros_like(h)
        h = torch.maximum(h, zero)
        return torch.einsum('bsf,fd->bsd', h, w2)
    x = A_x
    mod = (_silu(c) @ w_mod).reshape(c.shape[0], 6, 1, -1)
    sa, ca, ga, sb, cb, gb = (mod[:, 0].clone(), mod[:, 1].clone(), mod[:, 2].clone(), mod[:, 3].clone(), mod[:, 4].clone(), mod[:, 5].clone())
    h = _layernorm(x, axis=-1) * (1 + ca) + sa
    x = x + ga * _A_ref(h, A_k_cache, A_v_cache, A_wq, A_wo)
    h = _layernorm(x, axis=-1) * (1 + cb) + sb
    x = x + gb * _B_ref(h, B_w1, B_w2)
    return x
```

```python
import re


class Emit:
    def __init__(self):
        self.L = []
        self.vm = 0
        self.lg = 0
        self.vtag = {}
        self.ltag = {}

    def raw(self, s):
        self.L.append(s)

    def label(self, s):
        self.L.append(s + ":")

    def e(self, s, tag=None):
        op = s.split()[0]
        if op.startswith(("buffer_", "global_")) and not op.startswith(("buffer_wbl2", "buffer_inv")):
            self.vm += 1
            if tag is not None:
                self.vtag[tag] = self.vm
        elif op.startswith("ds_"):
            self.lg += 1
            if tag is not None:
                self.ltag[tag] = self.lg
        self.L.append(s)

    def vm_n(self, tag):
        return min(63, self.vm - self.vtag[tag])

    def lg_n(self, tag):
        return min(15, self.lg - self.ltag[tag])

    def wait(self, vtag=None, ltag=None, vm=None, lg=None):
        parts = []
        if vtag is not None:
            vm = self.vm_n(vtag)
        if ltag is not None:
            lg = self.lg_n(ltag)
        if vm is not None:
            parts.append(f"vmcnt({vm})")
        if lg is not None:
            parts.append(f"lgkmcnt({lg})")
        self.L.append("s_waitcnt " + " ".join(parts))

    def nop(self, n):
        while n > 0:
            k = min(n, 16)
            self.L.append(f"s_nop {k-1}")
            n -= k

    def text(self):
        out = []
        for x in self.L:
            out.append(x if (x.endswith(":") or x.startswith(".")) else " " + x)
        return "\n".join(out) + "\n"


def A(b, n=1):
    return f"a{b}" if n == 1 else f"a[{b}:{b+n-1}]"


def V(b, n=1):
    return f"v{b}" if n == 1 else f"v[{b}:{b+n-1}]"


def S(b, n=1):
    return f"s{b}" if n == 1 else f"s[{b}:{b+n-1}]"


_REG = re.compile(r"^-?(?:abs\()?([vas])(?:(\d+)|\[(\d+):(\d+)\])\)?$")
TRANS = ("v_exp_f32", "v_log_f32", "v_rcp_f32", "v_rsq_f32", "v_sqrt_f32", "v_sin_f32", "v_cos_f32")


def regs(tok):
    tok = tok.strip()
    if tok == "vcc":
        return {("s", "vcc")}
    if tok == "m0":
        return {("s", "m0")}
    if tok == "exec":
        return {("s", "exec")}
    m = _REG.match(tok)
    if not m:
        return set()
    t = m.group(1)
    if m.group(2) is not None:
        return {(t, int(m.group(2)))}
    return {(t, i) for i in range(int(m.group(3)), int(m.group(4)) + 1)}


class Ins:
    def __init__(self, s):
        self.s = s
        body = s.split(";")[0].strip()
        sp = body.split(None, 1)
        self.op = op = sp[0]
        rest = sp[1] if len(sp) > 1 else ""
        toks = [t.strip() for t in rest.split(",")] if rest else []
        mods = ""
        if toks:
            l = toks[-1].split(None, 1)
            toks[-1] = l[0]
            mods = l[1] if len(l) > 1 else ""
        self.mods = mods
        self.w = set(); self.r = set(); self.ab = set(); self.c = set(); self.sdata = set()
        self.kind = "other"
        self.states = 1
        if op == "s_nop":
            self.states = int(toks[0]) + 1
        R = [regs(t) for t in toks]
        if op.startswith("v_mfma"):
            self.kind = "mfma"
            self.passes = 4 if "16x16x32" in op else 8
            self.w = R[0]; self.ab = R[1] | R[2]; self.c = R[3]; self.r = self.ab | self.c
        elif op.startswith("v_cmp"):
            self.kind = "valu"; self.w = R[0]
            for x in R[1:]: self.r |= x
        elif op.startswith(("v_readfirstlane", "v_readlane")):
            self.kind = "valu"; self.w = R[0]; self.r = set().union(*R[1:]); self.lane = True
        elif op.startswith("v_permlane"):
            self.kind = "valu"; self.w = R[0] | R[1]; self.r = R[0] | R[1]
        elif op.startswith("v_"):
            self.kind = "valu"
            if op != "v_nop":
                self.w = R[0]
                for x in R[1:]: self.r |= x
                if op.startswith(("v_fmac", "v_dot2c", "v_writelane")) or "dpp" in op:
                    self.r |= R[0]
                if op.startswith("v_cndmask") and len(toks) == 3: self.r |= {("s", "vcc")}
                if op.startswith(("v_add_co", "v_addc", "v_sub_co")):
                    self.w |= R[1]
        elif op.startswith("ds_"):
            self.kind = "ds"
            if "read" in op or "permute" in op or "swizzle" in op:
                self.w = R[0]
                for x in R[1:]: self.r |= x
            else:
                for x in R: self.r |= x
        elif op.startswith(("buffer_", "global_")):
            self.kind = "vmem"
            lds = "lds" in mods.split() or "_lds_" in op
            self.lds = lds
            if op.startswith(("buffer_wbl2", "buffer_inv")):
                pass
            elif "load" in op and not lds:
                self.w = R[0]
                for x in R[1:]: self.r |= x
            else:
                for x in R: self.r |= x
                if "store" in op and ("x4" in op or "x3" in op):
                    self.sdata = R[0] if op.startswith("buffer") else R[1]
                if "atomic" in op and "sc0" in mods.split():
                    self.w = R[0]
            if lds: self.r |= {("s", "m0")}
        elif op.startswith("s_"):
            self.kind = "salu"
            if op.startswith(("s_cmp", "s_cbranch", "s_branch", "s_waitcnt", "s_barrier", "s_nop", "s_setprio", "s_sleep", "s_endpgm", "s_setpc", "s_bitcmp")):
                for x in R: self.r |= x
            else:
                if R: self.w = R[0]
                for x in R[1:]: self.r |= x
        self.trans = op.replace("_e32", "").replace("_e64", "") in TRANS
        self.dpp = "dpp" in op
        self.perm = op.startswith("v_permlane")
        self.lane = op.startswith(("v_readfirstlane", "v_readlane"))
        self.dot = op.startswith("v_dot")


def vec(s):
    return {x for x in s if x[0] in "va"}


def sca(s):
    return {x for x in s if x[0] == "s"}


def need(p, c):
    n = 0
    if p.kind == "valu":
        pw = vec(p.w)
        if c.kind == "mfma" and pw & c.r: n = max(n, 2)
        if p.trans and c.kind == "valu" and not c.trans and pw & c.r: n = max(n, 1)
        if p.trans and c.kind in ("ds", "vmem") and pw & c.r: n = max(n, 1)
        if c.lane and pw & c.r: n = max(n, 1)
        if (c.perm or c.dpp) and pw & c.r: n = max(n, 2)
        if p.dot and c.kind != "salu" and pw & (c.r | c.w) and not (c.op == p.op): n = max(n, 3)
        sw = sca(p.w)
        if sw:
            if c.kind == "valu" and sw & c.r: n = max(n, 4 if c.op.startswith(("v_readlane", "v_writelane")) else 2)
            if c.kind == "vmem" and sw & c.r: n = max(n, 5)
            if c.kind == "salu" and sw & c.r and not c.op.startswith("s_cbranch"): n = max(n, 1)
    if p.kind == "mfma":
        big = 8 if p.passes == 4 else 12
        if c.kind == "mfma":
            if p.w & c.ab: n = max(n, big)
            if p.w & c.c and not (p.w == c.c and p.passes == c.passes): n = max(n, big - 2)
            if p.w & c.w and not (p.w == c.c): n = max(n, big - 2)
        elif c.kind in ("valu", "ds", "vmem"):
            if p.w & (c.r | c.w): n = max(n, big)
            if c.kind == "valu" and p.c & c.w: n = max(n, 3 if p.passes == 4 else 7)
    if p.kind == "salu" and ("s", "m0") in p.w and c.kind == "vmem" and getattr(c, "lds", False): n = max(n, 1)
    if p.kind == "salu" and ("s", "exec") in p.w and c.dpp: n = max(n, 1)
    if p.kind == "vmem" and p.sdata and c.kind == "valu" and p.sdata & c.w: n = max(n, 2)
    if p.kind == "vmem" and p.sdata and c.kind in ("ds", "vmem") and p.sdata & c.w: n = max(n, 1)
    return n


def check_hazards(lines, verbose=True):
    ins = []
    labels = {}
    lineno = []
    for ln, s in enumerate(lines):
        t = s.strip()
        if not t or t.startswith((";", ".")):
            continue
        if t.endswith(":"):
            labels[t[:-1]] = len(ins)
            continue
        ins.append(Ins(t)); lineno.append(ln)
    calls = [i for i, x in enumerate(ins) if x.op == "s_call_b64"]

    def succ(i):
        x = ins[i]
        if x.op == "s_endpgm": return []
        tgt = x.s.split()[-1]
        if x.op == "s_branch": return [labels[tgt]]
        if x.op == "s_call_b64": return [labels[tgt]]
        if x.op == "s_setpc_b64": return [c + 1 for c in calls]
        r = [i + 1] if i + 1 < len(ins) else []
        if x.op.startswith("s_cbranch"): r.append(labels[tgt])
        return r
    bad = []
    for i, p in enumerate(ins):
        if p.kind not in ("valu", "mfma", "salu", "vmem"): continue
        if p.kind == "salu" and not (p.w & {("s", "m0"), ("s", "exec")}): continue
        if p.kind == "vmem" and not p.sdata: continue
        lim = 13 if p.kind == "mfma" else 6
        stack = [(j, 0) for j in succ(i)]
        seen = {}
        while stack:
            j, d = stack.pop()
            if d >= lim or seen.get(j, 99) <= d: continue
            seen[j] = d
            c = ins[j]
            n = need(p, c)
            if n > d:
                bad.append((i, lineno[j], n, d, p.s, c.s))
            for k in succ(j):
                stack.append((k, d + c.states))
    if verbose:
        for b in bad[:40]:
            print("HAZARD need %d have %d:\n    %s\n    %s" % (b[2], b[3], b[4], b[5]))
    return bad


def fix_hazards(lines):
    lines = list(lines)
    total = 0
    while True:
        bad = check_hazards(lines, verbose=False)
        if not bad:
            break
        ins = {}
        for b in bad:
            ins[b[1]] = max(ins.get(b[1], 0), b[2] - b[3])
        loop = [i for i, x in enumerate(lines) if x.strip() == "L_loop:" or x.strip().endswith("scc1 L_loop")]
        for ln in sorted(ins, reverse=True):
            if len(loop) == 2 and loop[0] < ln < loop[1]:
                print("note: nop inside main loop before", lines[ln])
            lines.insert(ln, f"s_nop {ins[ln]-1}")
            total += 1
    print("hazard nops inserted:", total)
    return lines
```

```python
import sys, math, struct
from asmlib import Emit, A, V, S, check_hazards, fix_hazards

NAME = "adaLN_cond__gqa_block_cached__dense_activation_relu__prompt"
MF = "v_mfma_f32_16x16x32_bf16"
CS = math.log2(math.e) / math.sqrt(128.0)


def f2u(x):
    return struct.unpack("<I", struct.pack("<f", x))[0]


WS_MOD = 0
WS_FLAG = 65536
WS_P1 = 1 << 20
WS_H2 = 17 << 20
WS_P2 = 20 << 20
WS_DBG = 40 << 20
WS_STAMP = 100 << 20
WS_BYTES = 268435456
L_K = 0
L_V = 65536
L_X = 131072
LDS_BYTES = 163840
BIAS = 32.0
THR = 64

sW, sG, sC = 3, 32, 33
SRD_X, SRD_K, SRD_V, SRD_WA, SRD_WB, SRD_WS, SRD_WC = 4, 8, 12, 16, 20, 24, 28
sKoff, sVoff, sKVb, sThr, sCnt, sSlA, sSlB = 34, 35, 36, 37, 38, 39, 40
sT = 41
sRet = 50
sSo = 52
P_X, P_K, P_V, P_WQ, P_WO, P_W1, P_W2, P_C, P_WM, P_OUT, P_DBG, P_WS = 64, 66, 68, 70, 72, 76, 78, 80, 82, 84, 86, 88
vLane = 1
vBa = 2
vWq = 6
vHw = 14
vLS = 16
vTrA, vTrB = 48, 56
vAcc = 64
vS, vP, vM, vT = 64, 128, 192, 208
vChk = 212
vKa, vVa, vDK, vDV = 224, 228, 236, 237
vOnes = 240
vWo = 244
vStC, vStR = 252, 253
aO, aQ, aK, aV = 0, 128, 192, 224
aGA, aGB = 128, 192


class Opt:
    dump = False
    stamps = False
    stop = None


def srd(E, base, ptr, nbytes, add=None):
    if add is None:
        E.e(f"s_mov_b32 s{base}, s{ptr}")
        E.e(f"s_mov_b32 s{base+1}, s{ptr+1}")
    else:
        E.e(f"s_add_u32 s{base}, s{ptr}, s{add}")
        E.e(f"s_addc_u32 s{base+1}, s{ptr+1}, 0")
    E.e(f"s_mov_b32 s{base+2}, {nbytes}")
    E.e(f"s_mov_b32 s{base+3}, 0x20000")


_stamp_n = [0]


def stamp(E, name):
    if not Opt.stamps:
        return
    i = _stamp_n[0]; _stamp_n[0] += 1
    Opt.stamp_names.append(name)
    E.e("s_memtime s[90:91]"); E.e("s_memrealtime s[92:93]"); E.e("s_waitcnt lgkmcnt(0)")
    E.e(f"v_writelane_b32 v{vStC}, s90, {i}"); E.e(f"v_writelane_b32 v{vStR}, s92, {i}")


def stream(E, mf, head, gaps):
    for i, m in enumerate(mf):
        if m is not None:
            E.e(m)
        for x in head[i] + gaps[i]:
            if callable(x):
                x()
            elif isinstance(x, tuple):
                E.e(x[0], tag=x[1])
            else:
                E.e(x)


def slot_m0(slot, extra=0):
    if slot == 0:
        return f"s_add_u32 m0, s{sSlA}, {extra}"
    return f"s_add_u32 m0, s{sSlB}, {(slot-1)*8192+extra}"


class Units:
    def __init__(self, specs):
        self.specs = specs
        self.next = 0

    def items(self):
        if self.next >= len(self.specs):
            return []
        u = self.next; self.next += 1
        kind, i = self.specs[u]
        slot = u % 3
        so = sSo + (u & 1)
        out = []
        tag = (kind, i)
        if kind in ("wq", "wo", "w2"):
            sr, va, step = {"wq": (SRD_WA, vWq, 262144), "wo": (SRD_WB, vWo, 32768), "w2": (SRD_WC, vWo, 32768)}[kind]
            out.append([f"s_mov_b32 s{so}, {i*step}", slot_m0(slot)])
            for b in range(8):
                it = [(f"buffer_load_dwordx4 v{va+b}, {S(sr,4)}, s{so} offen offset:{(b&3)*1024} lds", tag)]
                if b == 3:
                    it.append(slot_m0(slot, 4096))
                out.append(it)
        else:
            out.append([f"s_mov_b32 s{so}, {2*i*114688}", slot_m0(slot)])
            for b in range(8):
                it = [(f"buffer_load_dwordx4 v{vW1d+(b&3)}, {S(SRD_WA,4)}, s{so} offen offset:{(b&3)*1024} lds", tag)]
                if b == 3:
                    it += [slot_m0(slot, 4096), f"s_mov_b32 s{so}, {(2*i+1)*114688}"]
                out.append(it)
        return out

    def slot_of(self, kind, i):
        return self.specs.index((kind, i)) % 3


def emit_items(E, items):
    for it in items:
        for x in it:
            if isinstance(x, tuple):
                E.e(x[0], tag=x[1])
            else:
                E.e(x)
        if not any(isinstance(x, tuple) for x in it[-1:]):
            E.e("s_nop 0")


vW1tA, vW1tB, vW1d, vFr, vFw = 6, 10, 200, 204, 208


def gemm(E, U, kind, nks, bregs, bstride, extra=()):
    NT = 4 if kind == "w1" else 8
    NM = NT * 4
    extra = list(extra)

    def unit(ks):
        return (kind, ks // 2) if kind == "w1" else (kind, ks)

    def a_reads(ks):
        slot = U.slot_of(*unit(ks))
        off = 0 if slot < 2 else 8192
        if kind == "w1":
            base = vW1tA if slot == 0 else vW1tB
            off += (ks & 1) * 4096
        else:
            base = vTrA if slot == 0 else vTrB
        r = []
        for nt in range(NT):
            for e_ in range(2):
                d = aGA + (ks & 1) * 32 + nt * 4 + e_ * 2
                r.append((f"ds_read_b64_tr_b16 {A(d,2)}, v{base+nt} offset:{off+e_*1024}", ("A", ks)))
        return r

    def b_reads(ks):
        return [(f"ds_read_b128 {A(aGB+(ks&1)*16+rt*4,4)}, v{bregs+(ks&3)} offset:{rt*16*bstride+(ks>>2)*256}", ("B", ks))
                for rt in range(4)]

    def frees(ks):
        return kind != "w1" or (ks & 1) == 1

    E.wait(vtag=unit(0))
    for x in a_reads(0) + b_reads(0):
        E.e(x[0], tag=x[1])
    E.wait(lg=0)
    if frees(0):
        emit_items(E, U.items())
    for ks in range(nks):
        mf = []
        for nt in range(NT):
            for rt in range(4):
                acc = V(vAcc + (nt * 4 + rt) * 4, 4)
                c = "0" if ks == 0 else acc
                mf.append(f"{MF} {acc}, {A(aGA+(ks&1)*32+nt*4,4)}, {A(aGB+(ks&1)*16+rt*4,4)}, {c}")
        head = [[] for _ in range(NM)]; gaps = [[] for _ in range(NM)]
        if ks + 1 < nks:
            ar = a_reads(ks + 1); br = b_reads(ks + 1)
            if unit(ks + 1) != unit(ks) or ks == 0:
                head[0].append(lambda k=ks: E.wait(vtag=unit(k + 1)))
            na = len(ar)
            for i, x in enumerate(ar):
                head[i].append(x)
                if extra:
                    x = extra.pop(0)
                    gaps[i].extend(x if isinstance(x, list) else [x])
            for i, x in enumerate(br):
                head[na + i].append(x)
            if frees(ks + 1):
                its = U.items()
                g0 = na + 3
                if its:
                    head[g0].append(lambda k=ks: E.wait(ltag=("A", k + 1)))
                    for i, it in enumerate(its):
                        g = min(g0 + i, NM - 2) if NT == 8 else min(g0 + i // 3, NM - 2)
                        if head[g] and i > 0 and not isinstance(head[g][-1], tuple) and not callable(head[g][-1]):
                            head[g].append("s_nop 0")
                        head[g] += it
            head[NM - 1].append(lambda: E.wait(lg=0))
        stream(E, mf, head, gaps)
    assert not extra


def addr_wdma128(e, dst, stride, permuted, colreg, t):
    e(f"v_lshrrev_b32 v{t}, 4, v{vLane}")
    e(f"v_and_b32 v{t+1}, 15, v{vLane}")
    e(f"v_lshlrev_b32 v{t+2}, 1, v{t}")
    e(f"v_xor_b32 v{t+1}, v{t+1}, v{t+2}")
    e(f"v_mul_u32_u24 v{t}, {stride}, v{t}")
    e(f"v_add_u32 v{t}, s{colreg}, v{t}")
    e(f"v_lshl_add_u32 v{t+2}, v{t+1}, 4, v{t}")
    e(f"v_xor_b32 v{t+1}, 8, v{t+1}")
    e(f"v_lshl_add_u32 v{t+3}, v{t+1}, 4, v{t}")
    for b in range(8):
        G, e_ = b >> 1, b & 1
        k = (16 * e_ + 4 * G) if permuted else 4 * b
        e(f"v_add_u32 v{dst+b}, {k*stride-(b&3)*1024}, v{t+2+(G&1)}")


def addr_tr128(e, t):
    e(f"v_lshrrev_b32 v{t}, 4, v{vLane}")
    e(f"v_bfe_u32 v{t+1}, v{vLane}, 2, 2")
    e(f"v_lshlrev_b32 v{t+2}, 11, v{t}")
    e(f"v_lshl_add_u32 v{t+2}, v{t+1}, 8, v{t+2}")
    e(f"v_and_b32 v{t}, 1, v{t}")
    e(f"v_lshl_add_u32 v{t}, v{t}, 2, v{t+1}")
    e(f"v_bfe_u32 v{t+1}, v{vLane}, 1, 1")
    e(f"v_lshl_add_u32 v{t}, v{t}, 1, v{t+1}")
    e(f"v_lshl_add_u32 v{t+2}, v{t}, 4, v{t+2}")
    e(f"v_and_b32 v{t}, 1, v{vLane}")
    e(f"v_lshl_add_u32 v{t+2}, v{t}, 3, v{t+2}")
    for nt in range(8):
        e(f"v_xor_b32 v{t}, {32*nt}, v{t+2}")
        e(f"v_add_u32 v{vTrA+nt}, s{sSlA}, v{t}")
        e(f"v_add_u32 v{vTrB+nt}, s{sSlB}, v{t}")


def addr_bimg(e, dst, stride_log2, base, t):
    e(f"v_and_b32 v{t}, 15, v{vLane}")
    e(f"v_lshrrev_b32 v{t+1}, 4, v{vLane}")
    e(f"v_xor_b32 v{t+1}, v{t+1}, v{t}")
    e(f"v_lshlrev_b32 v{t}, {stride_log2}, v{t}")
    e(f"v_lshl_add_u32 v{t}, v{t+1}, 4, v{t}")
    e(f"v_add_u32 v{t}, {base}, v{t}")
    for s in range(4):
        e(f"v_xor_b32 v{dst+s}, {64*s}, v{t}")


def addr_kv(e, t):
    e(f"v_lshrrev_b32 v{t}, 4, v{vLane}")
    e(f"v_and_b32 v{t+1}, 15, v{vLane}")
    e(f"v_lshlrev_b32 v{t+3}, 8, v{t}")
    e(f"v_add_u32 v{t+3}, s{sKVb}, v{t+3}")
    e(f"v_lshl_add_u32 v{t+2}, s{sW}, 2, v{t}")
    e(f"v_xor_b32 v{t+2}, v{t+2}, v{t+1}")
    e(f"v_lshl_add_u32 v{vDK}, v{t+2}, 4, v{t+3}")
    e(f"v_mov_b32 v{t+2}, s{sW}")
    e(f"v_and_b32 v{t+2}, 1, v{t+2}")
    e(f"v_lshlrev_b32 v{t+2}, 2, v{t+2}")
    e(f"v_add_lshl_u32 v{t+2}, v{t+2}, v{t}, 1")
    e(f"v_xor_b32 v{t+2}, v{t+2}, v{t+1}")
    e(f"v_lshl_add_u32 v{vDV}, v{t+2}, 4, v{t+3}")
    e(f"v_and_b32 v{t+2}, 3, v{vLane}")
    e(f"v_bfe_u32 v{t+3}, v{vLane}, 2, 2")
    e(f"v_lshl_add_u32 v{t+4}, v{t+3}, 4, v{t+2}")
    e(f"v_xor_b32 v{t+1}, v{t+1}, v{t}")
    e(f"v_lshlrev_b32 v{t+4}, 8, v{t+4}")
    e(f"v_lshl_add_u32 v{t+4}, v{t+1}, 4, v{t+4}")
    for s in range(4):
        e(f"v_xor_b32 v{vKa+s}, {64*s}, v{t+4}")
    e(f"v_lshl_add_u32 v{t+4}, v{t}, 4, v{t+3}")
    e(f"v_lshlrev_b32 v{t+4}, 8, v{t+4}")
    e(f"v_and_b32 v{t}, 1, v{t}")
    e(f"v_lshl_add_u32 v{t}, v{t}, 2, v{t+3}")
    e(f"v_lshrrev_b32 v{t+1}, 1, v{t+2}")
    e(f"v_lshl_add_u32 v{t}, v{t}, 1, v{t+1}")
    e(f"v_lshl_add_u32 v{t+4}, v{t}, 4, v{t+4}")
    e(f"v_and_b32 v{t}, 1, v{t+2}")
    e(f"v_lshl_add_u32 v{t+4}, v{t}, 3, v{t+4}")
    e(f"v_add_u32 v{t+4}, {L_V}, v{t+4}")
    for dt in range(8):
        e(f"v_xor_b32 v{vVa+dt}, {32*dt}, v{t+4}")


def addr_w1(e, t):
    e(f"v_lshrrev_b32 v{t}, 5, v{vLane}")
    e(f"v_bfe_u32 v{t+1}, v{vLane}, 2, 3")
    e(f"v_lshlrev_b32 v{t}, 11, v{t}")
    e(f"v_lshl_add_u32 v{t}, v{t+1}, 7, v{t}")
    e(f"v_and_b32 v{t+1}, 6, v{t+1}")
    e(f"v_bfe_u32 v{t+2}, v{vLane}, 1, 1")
    e(f"v_or_b32 v{t+1}, v{t+1}, v{t+2}")
    e(f"v_lshl_add_u32 v{t}, v{t+1}, 4, v{t}")
    e(f"v_and_b32 v{t+1}, 1, v{vLane}")
    e(f"v_lshl_add_u32 v{t}, v{t+1}, 3, v{t}")
    for nt in range(4):
        e(f"v_xor_b32 v{t+1}, {32*nt}, v{t}")
        e(f"v_add_u32 v{vW1tA+nt}, s{sSlA}, v{t+1}")
        e(f"v_add_u32 v{vW1tB+nt}, s{sSlB}, v{t+1}")
    e(f"v_lshrrev_b32 v{t}, 3, v{vLane}")
    e(f"v_and_b32 v{t+1}, 6, v{t}")
    e(f"v_and_b32 v{t+2}, 7, v{vLane}")
    e(f"v_xor_b32 v{t+1}, v{t+1}, v{t+2}")
    e(f"v_mul_u32_u24 v{t}, 3584, v{t}")
    e(f"v_lshl_add_u32 v{t}, v{t+1}, 4, v{t}")
    e(f"s_mul_i32 s{sT}, s{sG}, 448")
    e(f"s_lshl_b32 s{sT+1}, s{sW}, 7")
    e(f"s_add_u32 s{sT}, s{sT}, s{sT+1}")
    e(f"v_add_u32 v{t}, s{sT}, v{t}")
    e([f"s_cmp_eq_u32 s{sW}, 3", f"s_cselect_b32 s{sT}, 4, 8"])
    e(f"v_cmp_gt_u32 vcc, s{sT}, v{t+1}")
    e(f"v_mov_b32 v{t+2}, 0x40000000")
    e("s_nop 0")
    e(f"v_cndmask_b32 v{t}, v{t+2}, v{t}, vcc")
    for b in range(4):
        k = 16 * (b & 1) + 8 * (b >> 1)
        e(f"v_add_u32 v{vW1d+b}, {k*3584-b*1024}, v{t}")
    addr_bimg(e, vFr, 9, L_V, t)
    e(f"s_lshr_b32 s{sT}, s{sW}, 1"); e(f"s_lshl_b32 s{sT}, s{sT}, 8")
    e(f"s_and_b32 s{sT+1}, s{sW}, 1"); e(f"s_lshl_b32 s{sT+1}, s{sT+1}, 7")
    e(f"v_xor_b32 v{t}, s{sT+1}, v{vFr}")
    e(f"v_add_u32 v{vFw}, s{sT}, v{t}")
    e(f"v_xor_b32 v{vFw+1}, 64, v{vFw}")


def Sreg(par, kt, qt): return vS + par * 32 + (kt * 4 + qt) * 4
def Preg(buf, kg, qt): return vP + buf * 32 + (kg * 4 + qt) * 4
def Lreg(par, qt): return vLS + par * 16 + qt * 4
def Oreg(dt, qt): return aO + (dt * 4 + qt) * 4
def Qreg(qt, s): return aQ + (qt * 4 + s) * 4


def dmaK(n): return f"buffer_load_dwordx4 v{vDK}, {S(SRD_K,4)}, s{sKoff} offen offset:{1024*n} lds"
def dmaV(n): return f"buffer_load_dwordx4 v{vDV}, {S(SRD_V,4)}, s{sVoff} offen offset:{1024*n} lds"


def kv_items(kind, tile):
    slot = tile % 4
    base = slot * 16384 + (L_V if kind == "V" else 0)
    off = sKoff if kind == "K" else sVoff
    f = dmaK if kind == "K" else dmaV
    its = [[(f(n), (kind, tile))] for n in range(4)]
    its[3].append(f"s_add_u32 s{off}, s{off}, 16384")
    return f"s_add_u32 m0, s{sKVb}, {base}", its


def kread(half, kt, s):
    return f"ds_read_b128 {A(aK+kt*16+4*s,4)}, v{vKa+s} offset:{((half//2)%4)*16384+((half%2)*2+kt)*1024}"


def sm_exp(t, qt, kt, r): return f"v_exp_f32 v{vT+r}, v{Sreg(t&1,kt,qt)+r}"
def sm_cvt(t, qt, kt, h): return f"v_cvt_pk_bf16_f32 v{Preg((t//2)&1,t&1,qt)+2*kt+h}, v{vT+2*h}, v{vT+2*h+1}"
def sm_sum(t, qt): return f"{MF} {V(Lreg(t&1,qt),4)}, {V(vOnes,4)}, {V(Preg((t//2)&1,t&1,qt),4)}, {V(Lreg((t&1)^1,qt),4)}"


def stage(E, t, label, vmwait=None, dma=()):
    par = t & 1
    qk = t + 1 <= 63
    pv = t >= 2
    smA = t <= 63
    smB = t + 1 <= 63
    mf = []; head = []; gaps = []
    idx = {}

    def add(p, j, m):
        idx[(p, j)] = len(mf); mf.append(m); head.append([]); gaps.append([])
    for p in range(8):
        kt, qt = p // 4, p % 4
        for s in range(4):
            c = V(vM + qt * 4, 4) if s == 0 else V(Sreg(par ^ 1, kt, qt), 4)
            add(p, s, f"{MF} {V(Sreg(par^1,kt,qt),4)}, {A(aK+kt*16+4*s,4)}, {A(Qreg(qt,s),4)}, {c}" if qk else None)
        if smA and p % 2 == 0:
            add(p, "S", sm_sum(t, p // 2))
        dtl = p // 2; dt = 4 * par + dtl
        vb = aV + ((4 * t + dtl) % 4) * 8
        pb = (t // 2 - 1) & 1
        for j in range(4):
            q_ = 2 * (p & 1) + j // 2; kg = j & 1
            add(p, 4 + j, f"{MF} {A(Oreg(dt,q_),4)}, {A(vb+4*kg,4)}, {V(Preg(pb,kg,q_),4)}, {A(Oreg(dt,q_),4)}" if pv else None)
    H = lambda p, j: head[idx[(p, j)]]
    G = lambda p, j: gaps[idx[(p, j)]]
    for p in range(8):
        half, kt = (t + 1, 1) if p < 4 else (t + 2, 0)
        kr = half <= 63
        if kr:
            H(p, 0).append(kread(half, kt, p % 4))
        vs = 4 * t + p // 2 + 1
        tt = vs // 4; dt = 4 * (tt & 1) + vs % 4; vt = tt // 2 - 1
        vr = 0 <= vt <= 31
        if vr:
            vb = aV + (vs % 4) * 8; kg = p & 1
            for e_ in range(2):
                H(p, 2 + 2 * e_).append(f"ds_read_b64_tr_b16 {A(vb+4*kg+2*e_,2)}, v{vVa+dt} offset:{(vt%4)*16384+(2*kg+e_)*1024}")
        if p % 2 == 0 and pv:
            H(p, 3).append(f"s_waitcnt lgkmcnt({int(kr)+int(vr)})")
        if p % 4 == 3:
            w = [f"lgkmcnt({2 if vr else 0})"] if kr else []
            if p == 3 and vmwait is not None:
                if not kr: w = [f"lgkmcnt({2 if vr else 0})"]
                H(p, 7).append(lambda w=w: E.e(f"s_waitcnt vmcnt({vmwait()}) " + " ".join(w)))
                H(p, 7).append("s_barrier")
            elif w:
                H(p, 7).append("s_waitcnt " + w[0])
        if p < 6:
            on, ts, q_, kt_ = smA, t, 1 + p // 2, p & 1
        else:
            on, ts, q_, kt_ = smB, t + 1, 0, p & 1
        if on:
            for r in range(4):
                G(p, 2 * r + 1).append(sm_exp(ts, q_, kt_, r))
            G(p, 4).append(sm_cvt(ts, q_, kt_, 0))
        if p == 0:
            pon, pts, pq, pk = smA, t, 0, 1
        elif p <= 6:
            pon, pts, pq, pk = smA, t, 1 + (p - 1) // 2, (p - 1) & 1
        else:
            pon, pts, pq, pk = smB, t + 1, 0, 0
        if pon:
            G(p, 0).append(sm_cvt(pts, pq, pk, 1))
            if not qk and p % 2 == 0:
                G(p, 3).append("s_nop 0")
    if smA and label is not None:
        G(6, "S").append(f"v_max3_f32 v{vChk}, v{Lreg(par,0)}, v{Lreg(par,1)}, v{Lreg(par,2)}")
        if pv and qk:
            G(7, 2).append(f"v_max_f32 v{vChk}, v{vChk}, v{Lreg(par,3)}")
        else:
            G(7, 5).append("s_nop 3")
            G(7, 5).append(f"v_max_f32 v{vChk}, v{vChk}, v{Lreg(par,3)}")
        G(7, 6).append(f"v_cmp_ngt_f32 vcc, s{sThr}, v{vChk}")
        G(7, 7).append(f"s_cbranch_vccnz L_tr_{label}")
        G(7, 7).append(lambda: E.label(f"L_back_{label}"))
    for (p, pre, it) in dma:
        if pre is not None:
            H(p, 5).append(pre)
            if not pv: H(p, 5).append("s_nop 0")
        H(p, 6).extend(it)
    stream(E, mf, head, gaps)


def kv_plan(t):
    d = []
    if t % 2 == 0:
        i = t // 2 + 1
        if i + 2 <= 31:
            m0, its = kv_items("K", i + 2)
            d += [(4 + n, m0 if n == 0 else None, its[n]) for n in range(4)]
    else:
        i = (t + 1) // 2
        if i + 1 <= 31:
            m0, its = kv_items("V", i + 1)
            d += [(2 * n, m0 if n == 0 else None, its[n]) for n in range(4)]
    return d


def rowmax_all(E, x, tmp):
    for op in ("v_permlane32_swap_b32", "v_permlane16_swap_b32"):
        E.e(f"v_mov_b32 v{tmp}, v{x}"); E.nop(2)
        E.e(f"{op} v{tmp}, v{x}"); E.nop(1)
        E.e(f"v_max_f32 v{x}, v{x}, v{tmp}")


def rare(E, k):
    t = k; par = t & 1
    tm = 216
    E.label(f"L_rare_{k}")
    E.nop(16)
    for qt in range(4):
        d, f = tm, tm + 1
        a, b = Sreg(par, 0, qt), Sreg(par, 1, qt)
        E.e(f"v_log_f32 v{d}, v{Lreg(par^1,qt)}")
        E.e(f"v_max3_f32 v{f}, v{a}, v{a+1}, v{a+2}")
        E.e(f"v_max3_f32 v{f}, v{f}, v{a+3}, v{b}")
        E.e(f"v_max3_f32 v{f}, v{f}, v{b+1}, v{b+2}")
        E.e(f"v_max3_f32 v{d}, v{d}, v{f}, v{b+3}")
        rowmax_all(E, d, f)
        E.e(f"v_ceil_f32 v{d}, v{d}")
        E.e(f"v_add_f32 v{d}, {f2u(BIAS)}, v{d}")
        E.e(f"v_max_f32 v{d}, 0, v{d}")
        E.e(f"v_exp_f32 v{f}, -v{d}")
        for i in range(4):
            E.e(f"v_sub_f32 v{vM+qt*4+i}, v{vM+qt*4+i}, v{d}")
        for pp in range(2):
            for kt in range(2):
                for i in range(4):
                    r = Sreg(pp, kt, qt) + i
                    E.e(f"v_sub_f32 v{r}, v{r}, v{d}")
        for i in range(4):
            r = Lreg(par ^ 1, qt) + i
            E.e(f"v_mul_f32 v{r}, v{r}, v{f}")
        for dt in range(8):
            for i in range(4):
                E.e(f"v_accvgpr_read_b32 v{tm+2+i}, a{Oreg(dt,qt)+i}")
            for i in range(4):
                E.e(f"v_mul_f32 v{tm+2+i}, v{tm+2+i}, v{f}")
            for i in range(4):
                E.e(f"v_accvgpr_write_b32 a{Oreg(dt,qt)+i}, v{tm+2+i}")
        u = t // 2
        pend = [((u - 1) & 1, 0), ((u - 1) & 1, 1)] if par == 0 else [(u & 1, 0)]
        for (buf, kg) in pend:
            for i in range(4):
                r = Preg(buf, kg, qt) + i
                E.e(f"v_lshlrev_b32 v{tm+2}, 16, v{r}")
                E.e(f"v_and_b32 v{tm+3}, 0xffff0000, v{r}")
                E.e(f"v_mul_f32 v{tm+2}, v{tm+2}, v{f}")
                E.e(f"v_mul_f32 v{tm+3}, v{tm+3}, v{f}")
                E.e(f"v_cvt_pk_bf16_f32 v{r}, v{tm+2}, v{tm+3}")
        for kt in range(2):
            for r in range(4):
                E.e(sm_exp(t, qt, kt, r))
            E.nop(1)
            E.e(sm_cvt(t, qt, kt, 0)); E.e(sm_cvt(t, qt, kt, 1))
        E.nop(2)
        E.e(sm_sum(t, qt))
    for kt in range(2):
        for r in range(4):
            E.e(sm_exp(t + 1, 0, kt, r))
        E.nop(1)
        E.e(sm_cvt(t + 1, 0, kt, 0))
        if kt == 0:
            E.e(sm_cvt(t + 1, 0, kt, 1))
    E.nop(12)
    E.e(f"s_setpc_b64 {S(sRet,2)}")


def attention(E, U):
    E.wait(vtag=("K", 0)); E.e("s_barrier")
    for kt in range(2):
        for s in range(4):
            E.e(kread(0, kt, s), tag=("k0", kt))
    for i in range(16):
        E.e(f"v_mov_b32 v{Lreg(1,0)+i}, 0")
    E.e(f"s_mov_b32 s{sThr}, {hex((127+THR) << 23)}")
    for kt in range(2):
        E.wait(ltag=("k0", kt))
        for qt in range(4):
            for s in range(4):
                c = "0" if s == 0 else V(Sreg(0, kt, qt), 4)
                E.e(f"{MF} {V(Sreg(0,kt,qt),4)}, {A(aK+kt*16+4*s,4)}, {A(Qreg(qt,s),4)}, {c}")
                if kt == 1 and qt == 1:
                    E.e(kread(1, 0, s))
    E.nop(8)
    tm = 216
    for qt in range(4):
        a, b = Sreg(0, 0, qt), Sreg(0, 1, qt)
        E.e(f"v_max3_f32 v{tm+qt}, v{a}, v{a+1}, v{a+2}")
        E.e(f"v_max3_f32 v{tm+qt}, v{tm+qt}, v{a+3}, v{b}")
        E.e(f"v_max3_f32 v{tm+qt}, v{tm+qt}, v{b+1}, v{b+2}")
        E.e(f"v_max_f32 v{tm+qt}, v{tm+qt}, v{b+3}")
    for op in ("v_permlane32_swap_b32", "v_permlane16_swap_b32"):
        for qt in range(4): E.e(f"v_mov_b32 v{tm+4+qt}, v{tm+qt}")
        E.nop(1)
        for qt in range(4): E.e(f"{op} v{tm+4+qt}, v{tm+qt}")
        for qt in range(4): E.e(f"v_max_f32 v{tm+qt}, v{tm+qt}, v{tm+4+qt}")
    for qt in range(4):
        E.e(f"v_ceil_f32 v{tm+qt}, v{tm+qt}")
    for qt in range(4):
        for i in range(4):
            E.e(f"v_sub_f32 v{vM+qt*4+i}, {f2u(-BIAS)}, v{tm+qt}")
        for kt in range(2):
            for i in range(4):
                r = Sreg(0, kt, qt) + i
                E.e(f"v_add_f32 v{r}, v{r}, v{vM+qt*4}")
    for kt in range(2):
        for r in range(4): E.e(sm_exp(0, 0, kt, r))
        E.nop(1)
        E.e(sm_cvt(0, 0, kt, 0))
        if kt == 0: E.e(sm_cvt(0, 0, kt, 1))
    E.wait(lg=0)
    stamp(E, "attn_pro")
    sites = []
    stage(E, 0, None, vmwait=lambda: E.vm_n(("V", 0)), dma=kv_plan(0))
    stage(E, 1, "s1", dma=kv_plan(1)); sites.append(("s1", 1))
    E.e(f"s_mov_b32 s{sCnt}, 7")
    E.raw(".p2align 6")
    E.label("L_loop")
    for t in range(2, 10):
        stage(E, t, f"m{t}", vmwait=(lambda: 8) if t % 2 == 0 else None, dma=kv_plan(t)); sites.append((f"m{t}", t))
    E.e(f"s_sub_u32 s{sCnt}, s{sCnt}, 1"); E.e(f"s_cmp_lg_u32 s{sCnt}, 0"); E.e("s_cbranch_scc1 L_loop")
    E.vtag[("V", 29)] = E.vm - 8; E.vtag[("V", 30)] = E.vm
    for t in range(58, 66):
        d = kv_plan(t)
        if t in (60, 62, 63):
            its = U.items()
            pairs = {60: [4, 4, 5, 5, 6, 6, 7, 7], 62: [4, 4, 5, 5, 6, 6, 7, 7], 63: list(range(8))}[t]
            pre = its[0]
            for b in range(8):
                it = list(its[1 + b])
                if b == 0: it = pre + ["s_nop 0"] + it
                if b == 3 and pairs[4] == pairs[3]: it.append("s_nop 0")
                d.append((pairs[b], None, it))
        vw = None
        if t in (58, 60, 62):
            vw = lambda t=t: E.vm_n(("V", t // 2))
        stage(E, t, f"e{t}" if t <= 63 else None, vmwait=vw, dma=d)
        if t <= 63: sites.append((f"e{t}", t))
    stamp(E, "attn_loop")
    E.wait(lg=0)
    for qt in range(4):
        E.e(f"v_rcp_f32 v{tm+qt}, v{Lreg(1,qt)}")
    E.e(f"s_lshl_b32 s{sT}, s{sW}, 8")
    for s in range(4):
        E.e(f"v_add_u32 v{vT+s}, s{sT}, v{vBa+s}")
    E.e("s_barrier")
    for qt in range(4):
        for s in range(4):
            b = vS + ((qt * 4 + s) & 1) * 8
            for h in range(2):
                for i in range(4):
                    E.e(f"v_accvgpr_read_b32 v{b+4*h+i}, a{Oreg(2*s+h,qt)+i}")
            for i in range(4):
                E.e(f"v_pk_mul_f32 {V(b+2*i,2)}, {V(b+2*i,2)}, {V(tm+(qt&~1),2)} op_sel:[0,{qt&1}] op_sel_hi:[1,{qt&1}]")
            o = vP + (qt * 4 + s) * 4
            for i in range(4):
                E.e(f"v_cvt_pk_bf16_f32 v{o+i}, v{b+2*i}, v{b+2*i+1}")
            E.e(f"ds_write_b128 v{vT+s}, {V(o,4)} offset:{qt*16384}")
    E.wait(lg=0); E.e("s_barrier")
    return sites


vFl = 210
vPst = 213
vPld = 214


def addr_xchg(e, t):
    e(f"s_mul_i32 s{sT}, s{sC}, 3072")
    e(f"s_add_u32 s{sT}, s{sT}, {WS_FLAG}")
    e(f"s_lshl_b32 s{sT+1}, s{sG}, 2")
    e(f"s_add_u32 s{sT+1}, s{sT+1}, s{sT}")
    e(f"v_lshlrev_b32 v{t}, 7, v{vLane}")
    e(f"v_add_u32 v{t}, s{sT+1}, v{t}")
    e(f"v_cmp_gt_u32 vcc, 8, v{vLane}")
    e(f"v_mov_b32 v{t+1}, 0x40000000")
    e(f"s_lshl_b32 s{sT+1}, s{sG}, 7")
    e(f"v_cndmask_b32 v{vFl}, v{t+1}, v{t}, vcc")
    e(f"s_add_u32 s{sT+1}, s{sT+1}, s{sT}")
    e(f"v_and_b32 v{t}, 7, v{vLane}")
    e(f"v_lshl_add_u32 v{vFl+1}, v{t}, 2, s{sT+1}")
    e(f"v_mov_b32 v{vFl+2}, 1")
    e(f"v_bfe_u32 v{t}, v{vLane}, 3, 1")
    e(f"v_lshlrev_b32 v{t}, 16, v{t}")
    e(f"v_and_b32 v{t+1}, 7, v{vLane}")
    e(f"v_lshl_add_u32 v{t}, v{t+1}, 6, v{t}")
    e(f"v_lshrrev_b32 v{t+1}, 4, v{vLane}")
    e(f"v_lshl_add_u32 v{t}, v{t+1}, 4, v{t}")
    e(f"s_lshl_b32 s{sT}, s{sW}, 11")
    e(f"v_add_u32 v{vPst}, s{sT}, v{t}")
    e(f"v_lshrrev_b32 v{t}, 3, v{vLane}")
    e(f"v_lshlrev_b32 v{t}, 9, v{t}")
    e(f"v_and_b32 v{t+1}, 7, v{vLane}")
    e(f"v_lshl_add_u32 v{t}, v{t+1}, 4, v{t}")
    e(f"s_lshl_b32 s{sT}, s{sW}, 7")
    e(f"v_add_u32 v{vPld}, s{sT}, v{t}")
    e(f"v_add_u32 v{vPld+1}, 4096, v{vPld}")


def publish_partial(E, wsbase):
    E.e(f"s_lshl_b32 s{sT}, s{sC}, 19")
    E.e(f"s_lshl_b32 s{sT+1}, s{sG}, 13")
    E.e(f"s_add_u32 s{sT}, s{sT}, s{sT+1}")
    for rt in range(4):
        E.e(f"s_add_u32 s{sT+1+rt}, s{sT}, {wsbase+rt*131072}")
    E.nop(4)
    n = 0
    for np_ in range(4):
        for rt in range(4):
            o = 216 + (n % 6) * 4; n += 1
            for h in range(2):
                a = vAcc + ((2 * np_ + h) * 4 + rt) * 4
                E.e(f"v_cvt_pk_bf16_f32 v{o+2*h}, v{a}, v{a+1}")
                E.e(f"v_cvt_pk_bf16_f32 v{o+2*h+1}, v{a+2}, v{a+3}")
            E.e(f"buffer_store_dwordx4 {V(o,4)}, v{vPst}, {S(SRD_WS,4)}, s{sT+1+rt} offen offset:{np_*512} sc0 sc1", tag="pst")


def signal(E, phase, tag):
    E.wait(vtag=tag); E.e("s_barrier")
    E.e(f"s_cmp_lg_u32 s{sW}, 0"); E.e(f"s_cbranch_scc1 L_nosig{phase}")
    E.raw(f" buffer_store_dword v{vFl+2}, v{vFl}, {S(SRD_WS,4)}, 0 offen offset:{phase*1024} sc0 sc1")
    E.label(f"L_nosig{phase}")


def poll(E, phase):
    t = 238
    E.e(f"s_mov_b32 s{sCnt}, 0x100000")
    E.label(f"L_poll{phase}")
    E.e(f"buffer_load_dword v{t}, v{vFl+1}, {S(SRD_WS,4)}, 0 offen offset:{phase*1024} sc0 sc1")
    E.e(f"s_sub_u32 s{sCnt}, s{sCnt}, 1")
    E.e(f"s_cbranch_scc1 L_pollx{phase}")
    E.wait(vm=0)
    E.e(f"v_cmp_ne_u32 vcc, 1, v{t}")
    E.e(f"s_cbranch_vccnz L_poll{phase}")
    E.label(f"L_pollx{phase}")


def load_partials(E, wsbase):
    E.e(f"s_lshl_b32 s{sT}, s{sC}, 3"); E.e(f"s_add_u32 s{sT}, s{sT}, s{sG}"); E.e(f"s_lshl_b32 s{sT}, s{sT}, 16")
    E.e(f"s_add_u32 s{sT}, s{sT}, {wsbase}")
    for src in range(8):
        for pc in range(2):
            E.e(f"buffer_load_dwordx4 {V(64+(src*2+pc)*4,4)}, v{vPld+pc}, {S(SRD_WS,4)}, s{sT} offen sc0 sc1", tag=("pl", src))
        if src < 7:
            E.e(f"s_add_u32 s{sT}, s{sT}, 8192")


def sum_partials(E, dst):
    t = 216
    for src in range(8):
        E.wait(vtag=("pl", src))
        for i in range(8):
            r = 64 + src * 8 + i
            if src == 0:
                E.e(f"v_lshlrev_b32 v{dst+2*i}, 16, v{r}")
                E.e(f"v_and_b32 v{dst+2*i+1}, 0xffff0000, v{r}")
            else:
                b = t + (i & 3) * 2
                E.e(f"v_lshlrev_b32 v{b}, 16, v{r}")
                E.e(f"v_and_b32 v{b+1}, 0xffff0000, v{r}")
                E.e(f"v_pk_add_f32 {V(dst+2*i,2)}, {V(dst+2*i,2)}, {V(b,2)}")


def allred32(E, x, tmp):
    E.nop(2)
    E.e(f"v_add_f32_dpp v{x}, v{x}, v{x} quad_perm:[1,0,3,2] row_mask:0xf bank_mask:0xf"); E.nop(2)
    E.e(f"v_add_f32_dpp v{x}, v{x}, v{x} quad_perm:[2,3,0,1] row_mask:0xf bank_mask:0xf"); E.nop(2)
    E.e(f"v_add_f32_dpp v{x}, v{x}, v{x} row_ror:8 row_mask:0xf bank_mask:0xf")
    for op in ("v_permlane16_swap_b32", "v_permlane32_swap_b32"):
        E.e(f"v_mov_b32 v{tmp}, v{x}"); E.nop(2)
        E.e(f"{op} v{tmp}, v{x}"); E.nop(1)
        E.e(f"v_add_f32 v{x}, v{x}, v{tmp}")


def load_ptrs(E):
    E.e("s_load_dwordx16 s[64:79], s[0:1], 0")
    E.e("s_load_dwordx8 s[80:87], s[0:1], 64")
    E.e("s_load_dwordx2 s[88:89], s[0:1], 96")
    E.e(f"v_lshrrev_b32 v2, 6, v0"); E.e(f"v_and_b32 v{vLane}, 63, v0")
    E.e(f"v_readfirstlane_b32 s{sW}, v2")


def dump_regs(E, first, n, region, acc=False):
    if not Opt.dump:
        return
    E.nop(16)
    E.e(f"s_lshl_b32 s{sT}, s2, 2"); E.e(f"s_add_u32 s{sT}, s{sT}, s{sW}")
    E.e(f"s_mul_i32 s{sT}, s{sT}, {n*256}"); E.e(f"s_add_u32 s{sT}, s{sT}, {WS_DBG+region}")
    E.e(f"v_lshlrev_b32 v254, 2, v{vLane}")
    for i in range(n):
        r = A(first + i) if acc else V(first + i)
        E.e(f"buffer_store_dword {r}, v254, {S(SRD_WS,4)}, s{sT} offen")
        E.e(f"s_add_u32 s{sT}, s{sT}, 256")
    E.wait(vm=0)


def dump_lds(E, base, nbytes, region):
    if not Opt.dump:
        return
    E.e(f"s_mul_i32 s{sT}, s2, {nbytes}"); E.e(f"s_add_u32 s{sT}, s{sT}, {WS_DBG+region}")
    E.e(f"v_lshlrev_b32 v254, 2, v0"); E.e(f"v_add_u32 v255, {base}, v254")
    for i in range(nbytes // 1024):
        E.e(f"ds_read_b32 v238, v255 offset:{i*1024}"); E.wait(lg=0)
        E.e(f"buffer_store_dword v238, v254, {S(SRD_WS,4)}, s{sT} offen"); E.wait(vm=0)
        E.e(f"s_add_u32 s{sT}, s{sT}, 1024")
    E.e("s_barrier")


def main_kernel():
    E = Emit(); e = E.e
    e("s_cmp_ge_u32 s2, 256"); e("s_cbranch_scc1 L_end")
    load_ptrs(E)
    e(f"s_and_b32 s{sG}, s2, 7"); e(f"s_lshr_b32 s{sC}, s2, 3")
    if Opt.stamps:
        e(f"v_mov_b32 v{vStC}, 0"); e(f"v_mov_b32 v{vStR}, 0")
    e(f"s_lshl_b32 s{sKVb}, s{sW}, 12")
    e(f"s_lshl_b32 s{sSlA}, s{sW}, 13"); e(f"s_add_u32 s{sSlA}, s{sSlA}, {L_X}")
    e(f"s_lshl_b32 s{sSlB}, s{sW}, 14")
    e(f"s_lshl_b32 s{sT}, s{sC}, 16"); e(f"s_lshl_b32 s{sT+1}, s{sW}, 14"); e(f"s_add_u32 s{sT}, s{sT}, s{sT+1}")
    e(f"v_lshrrev_b32 v18, 4, v{vLane}"); e(f"v_and_b32 v19, 15, v{vLane}")
    e(f"v_lshlrev_b32 v20, 10, v18"); e(f"v_lshl_add_u32 v20, v19, 4, v20")
    e(f"v_lshlrev_b32 v21, 5, v19")
    e(f"s_lshl_b32 s{sT+2}, s{sG}, 2"); e(f"s_add_u32 s{sT+2}, s{sT+2}, s{sW}"); e(f"s_lshl_b32 s{sT+2}, s{sT+2}, 8")
    addr_wdma128(e, vWq, 8192, False, sT + 2, 24)
    e("s_waitcnt lgkmcnt(0)")
    stamp(E, "start")
    srd(E, SRD_X, P_X, 2097152)
    srd(E, SRD_WS, P_WS, WS_BYTES)
    srd(E, SRD_WA, P_WQ, 4194304)
    for j in range(4):
        for i in range(4):
            e(f"buffer_load_dwordx4 {V(64+(j*4+i)*4,4)}, v20, {S(SRD_X,4)}, s{sT} offen offset:{256*i}", tag=("x", j))
        if j < 3: e(f"s_add_u32 s{sT}, s{sT}, 4096")
    for a_ in range(2):
        for i in range(4):
            for h in range(2):
                e(f"buffer_load_dwordx4 {V(128+a_*32+i*8+h*4,4)}, v21, {S(SRD_WS,4)}, 0 offen offset:{WS_MOD+a_*2048+i*512+h*16}", tag="mod")
    UQ = Units([("wq", i) for i in range(16)])
    for _ in range(3):
        emit_items(E, UQ.items())
    e("s_getpc_b64 s[46:47]")
    e(f"v_lshlrev_b32 v22, 7, v0")
    for i in range(Opt.code_pf):
        e(f"global_load_dword v47, v22, s[46:47]")
        e(f"v_add_u32 v22, 32768, v22")
    e(f"s_lshl_b32 s{sT}, s{sG}, 19")
    srd(E, SRD_K, P_K, 524288, add=sT)
    srd(E, SRD_V, P_V, 524288, add=sT)
    srd(E, SRD_WB, P_WO, 524288, add=sT)
    e(f"s_mul_i32 s{sT}, s{sG}, 229376")
    srd(E, SRD_WC, P_W2, 229376, add=sT)
    addr_bimg(e, vBa, 10, L_V, 24)
    addr_tr128(e, 24)
    e(f"s_lshl_b32 s{sT}, s{sW}, 14"); e(f"s_add_u32 s{sT}, s{sT}, {L_V}")
    for j in range(4):
        e(f"v_add_u32 v24, {4*j}, v18"); e(f"v_xor_b32 v25, v24, v19")
        e(f"v_lshlrev_b32 v24, 10, v24"); e(f"v_lshl_add_u32 v24, v25, 4, v24")
        e(f"v_add_u32 v{vHw+j}, s{sT}, v24")
    for jj in range(2):
        js = (2 * jj, 2 * jj + 1)
        E.wait(vtag=("x", js[1]))
        for n, j in enumerate(js):
            u = 192 + n * 32
            for r in range(16):
                e(f"v_lshlrev_b32 v{u+2*r}, 16, v{64+j*16+r}")
                e(f"v_and_b32 v{u+2*r+1}, 0xffff0000, v{64+j*16+r}")
        def red(op_first):
            pass
        for n in range(2):
            u = 192 + n * 32; a = 24 + n * 4
            e(f"v_pk_add_f32 {V(a,2)}, {V(u,2)}, {V(u+2,2)}")
            e(f"v_pk_add_f32 {V(a+2,2)}, {V(u+4,2)}, {V(u+6,2)}")
        for r in range(4, 16):
            for n in range(2):
                u = 192 + n * 32; a = 24 + n * 4 + (r & 1) * 2
                e(f"v_pk_add_f32 {V(a,2)}, {V(a,2)}, {V(u+2*r,2)}")

        def rowred():
            for n in range(2):
                a = 24 + n * 4
                e(f"v_pk_add_f32 {V(a,2)}, {V(a,2)}, {V(a+2,2)}")
            for n in range(2):
                a = 24 + n * 4
                e(f"v_add_f32 v{a}, v{a}, v{a+1}")
            for sh in (8, 4, 2, 1):
                E.nop(1)
                for n in range(2):
                    a = 24 + n * 4
                    e(f"v_add_f32_dpp v{a}, v{a}, v{a} row_ror:{sh} row_mask:0xf bank_mask:0xf")
        rowred()
        for n in range(2):
            a = 24 + n * 4
            e(f"v_mul_f32 v{a}, {f2u(-1.0/512)}, v{a}")
        for r in range(16):
            for n in range(2):
                u = 192 + n * 32; a = 24 + n * 4
                e(f"v_pk_add_f32 {V(u+2*r,2)}, {V(u+2*r,2)}, {V(a,2)} op_sel_hi:[1,0]")
        for r in range(16):
            for n in range(2):
                u = 192 + n * 32; a = 24 + n * 4 + (r & 1) * 2
                if r < 2:
                    e(f"v_pk_mul_f32 {V(a,2)}, {V(u+2*r,2)}, {V(u+2*r,2)}")
                else:
                    e(f"v_pk_fma_f32 {V(a,2)}, {V(u+2*r,2)}, {V(u+2*r,2)}, {V(a,2)}")
        rowred()
        e(f"v_mov_b32 v23, {f2u(1e-5)}")
        for n in range(2):
            a = 24 + n * 4
            e(f"v_fmac_f32 v23, {f2u(1.0/512)}, v{a}")
            e(f"v_rsq_f32 v{a}, v23")
            if n == 0: e(f"v_mov_b32 v23, {f2u(1e-5)}")
        if jj == 0:
            E.wait(vtag="mod")
        E.nop(1)
        for n, j in enumerate(js):
            u = 192 + n * 32; a = 24 + n * 4
            for r in range(16):
                e(f"v_pk_mul_f32 {V(u+2*r,2)}, {V(u+2*r,2)}, {V(a,2)} op_sel_hi:[1,0]")
                e(f"v_pk_fma_f32 {V(u+2*r,2)}, {V(u+2*r,2)}, {V(160+2*r,2)}, {V(128+2*r,2)}")
                e(f"v_cvt_pk_bf16_f32 v{64+j*16+r}, v{u+2*r}, v{u+2*r+1}")
                if r % 4 == 3:
                    i = r // 4
                    e(f"ds_write_b128 v{vHw+j}, {V(64+j*16+4*i,4)} offset:{256*i}")
    E.wait(lg=0); e("s_barrier")
    stamp(E, "ln1")
    dump_lds(E, L_V, 65536, 0)
    extra = []
    addr_kv(extra.append, 216)
    extra.append(f"s_lshl_b32 s{sT}, s{sW}, 8")
    addr_wdma128(extra.append, vWo, 1024, True, sT, 216)
    extra += [f"v_mov_b32 v{vOnes+i}, 0x3f803f80" for i in range(4)]
    extra += [f"v_accvgpr_write_b32 a{aO+i}, 0" for i in range(128)]
    gemm(E, UQ, "wq", 16, vBa, 1024, extra)
    e("s_barrier")
    stamp(E, "qproj")
    e(f"s_mov_b32 s{sKoff}, 0"); e(f"s_mov_b32 s{sVoff}, 0")
    for kind, tile in (("K", 0), ("K", 1), ("V", 0), ("K", 2), ("V", 1)):
        m0, its = kv_items(kind, tile)
        e(m0); e("s_nop 0")
        for it in its:
            for x in it:
                e(x[0], tag=x[1]) if isinstance(x, tuple) else e(x)
    for qt in range(4):
        for s in range(4):
            o = 192 + ((qt * 4 + s) & 3) * 4
            for h in range(2):
                a = vAcc + ((2 * s + h) * 4 + qt) * 4
                e(f"v_cvt_pk_bf16_f32 v{o+2*h}, v{a}, v{a+1}")
                e(f"v_cvt_pk_bf16_f32 v{o+2*h+1}, v{a+2}, v{a+3}")
            E.nop(1)
            e(f"v_permlane32_swap_b32 v{o}, v{o+2}"); e(f"v_permlane32_swap_b32 v{o+1}, v{o+3}")
            E.nop(1)
            e(f"v_permlane16_swap_b32 v{o}, v{o+2}"); e(f"v_permlane16_swap_b32 v{o+1}, v{o+3}")
            for i in range(4):
                e(f"v_accvgpr_write_b32 a{Qreg(qt,s)+i}, v{o+i}")
    dump_regs(E, aQ, 64, 16 << 20, acc=True)
    stamp(E, "qepi")
    UT = Units([("wo", i) for i in range(16)] + [("w1", i) for i in range(8)] + [("w2", i) for i in range(7)])
    sites = attention(E, UT)
    stamp(E, "attn_epi")
    dump_lds(E, L_V, 65536, 32 << 20)
    srd(E, SRD_WA, P_W1, 1835008)
    extra = []
    addr_w1(extra.append, 216)
    addr_xchg(extra.append, 216)
    gemm(E, UT, "wo", 16, vBa, 1024, extra)
    stamp(E, "wo")
    E.nop(8)
    publish_partial(E, WS_P1)
    t = 238
    e(f"v_lshrrev_b32 v{t}, 3, v{vLane}"); e(f"v_and_b32 v{t+1}, 3, v{vLane}")
    e(f"v_lshlrev_b32 v{t}, 3, v{t}"); e(f"v_add_lshl_u32 v{t}, v{t}, v{t+1}, 4")
    e(f"v_lshrrev_b32 v{t+1}, 1, v{t}")
    e(f"v_bfe_u32 v{t+2}, v{vLane}, 2, 1"); e(f"v_lshl_add_u32 v{t+1}, v{t+2}, 10, v{t+1}")
    e(f"s_lshl_b32 s{sT+5}, s{sC}, 3"); e(f"s_add_u32 s{sT+5}, s{sT+5}, s{sG}"); e(f"s_lshl_b32 s{sT+5}, s{sT+5}, 2")
    e(f"s_add_u32 s{sT+5}, s{sT+5}, s{sW}"); e(f"s_lshl_b32 s{sT+5}, s{sT+5}, 11")
    vXo = 14
    e(f"v_add_u32 v{vXo}, s{sT+5}, v{t+1}")
    signal(E, 0, "pst")
    for q in range(4):
        e(f"buffer_load_dwordx2 {V(176+2*q,2)}, v{vXo}, {S(SRD_X,4)}, 0 offen offset:{(q>>1)*512+(q&1)*32}", tag="xr")
    for (dst, arr) in ((128, 2), (144, 4), (160, 3), (32, 5)):
        e(f"s_mov_b32 s{sT}, {WS_MOD+arr*2048}")
        for q in range(4):
            e(f"buffer_load_dwordx4 {V(dst+4*q,4)}, v{t}, {S(SRD_WS,4)}, s{sT} offen offset:{(q>>1)*1024+(q&1)*64}", tag="md")
    stamp(E, "pub1")
    poll(E, 0)
    stamp(E, "poll1")
    load_partials(E, WS_P1)
    sum_partials(E, 184)
    for i in range(8):
        e(f"v_lshlrev_b32 v{16+2*i}, 16, v{176+i}"); e(f"v_and_b32 v{17+2*i}, 0xffff0000, v{176+i}")
    for i in range(8):
        e(f"v_pk_fma_f32 {V(16+2*i,2)}, {V(184+2*i,2)}, {V(128+2*i,2)}, {V(16+2*i,2)}")
    a = 216
    e(f"v_pk_add_f32 {V(a,2)}, {V(16,2)}, {V(18,2)}")
    for i in range(2, 8): e(f"v_pk_add_f32 {V(a,2)}, {V(a,2)}, {V(16+2*i,2)}")
    e(f"v_add_f32 v{a}, v{a}, v{a+1}")
    allred32(E, a, a + 1)
    e(f"v_mul_f32 v{a}, {f2u(-1.0/512)}, v{a}")
    for i in range(8): e(f"v_pk_add_f32 {V(64+2*i,2)}, {V(16+2*i,2)}, {V(a,2)} op_sel_hi:[1,0]")
    e(f"v_pk_mul_f32 {V(a,2)}, {V(64,2)}, {V(64,2)}")
    for i in range(1, 8): e(f"v_pk_fma_f32 {V(a,2)}, {V(64+2*i,2)}, {V(64+2*i,2)}, {V(a,2)}")
    e(f"v_add_f32 v{a}, v{a}, v{a+1}")
    allred32(E, a, a + 1)
    e(f"v_mov_b32 v{a+1}, {f2u(1e-5)}"); e(f"v_fmac_f32 v{a+1}, {f2u(1.0/512)}, v{a}"); e(f"v_rsq_f32 v{a}, v{a+1}"); E.nop(1)
    for i in range(8):
        e(f"v_pk_mul_f32 {V(64+2*i,2)}, {V(64+2*i,2)}, {V(a,2)} op_sel_hi:[1,0]")
        e(f"v_pk_fma_f32 {V(64+2*i,2)}, {V(64+2*i,2)}, {V(144+2*i,2)}, {V(160+2*i,2)}")
        e(f"v_cvt_pk_bf16_f32 v{80+i}, v{64+2*i}, v{65+2*i}")
    e(f"v_lshrrev_b32 v{t}, 3, v{vLane}"); e(f"v_and_b32 v{t+1}, 3, v{vLane}")
    e(f"v_lshl_add_u32 v{t}, v{t}, 2, v{t+1}"); e(f"v_bfe_u32 v{t+1}, v{vLane}, 2, 1")
    e(f"v_lshl_add_u32 v{t}, v{t+1}, 6, v{t}"); e(f"v_lshlrev_b32 v{t}, 4, v{t}")
    e(f"s_add_u32 s{sT}, s{sT+5}, {WS_H2}")
    for pc in range(2):
        e(f"buffer_store_dwordx4 {V(80+4*pc,4)}, v{t}, {S(SRD_WS,4)}, s{sT} offen offset:{pc*512} sc0 sc1", tag="h2st")
    stamp(E, "ln2")
    signal(E, 1, "h2st")
    e(f"s_lshl_b32 s{sT}, s{sC}, 16"); e(f"s_lshl_b32 s{sT+1}, s{sW}, 14"); e(f"s_add_u32 s{sT}, s{sT}, s{sT+1}")
    e(f"s_add_u32 s{sT}, s{sT}, {WS_H2}"); e(f"s_add_u32 s{sT+1}, s{sT+1}, {L_V}")
    e(f"v_lshlrev_b32 v{t}, 4, v{vLane}")
    for r in range(16): e(f"v_xor_b32 v{64+r}, {16*r}, v{t}")
    poll(E, 1)
    stamp(E, "poll2")
    for r in range(16):
        if r % 4 == 0:
            e(f"s_add_u32 m0, s{sT+1}, {r*1024}"); e(f"s_add_u32 s{sT+2}, s{sT}, {r*1024}")
        e(f"buffer_load_dwordx4 v{64+r}, {S(SRD_WS,4)}, s{sT+2} offen offset:{(r&3)*1024} sc0 sc1 lds", tag="h2ld")
    E.wait(vm=0); e("s_barrier")
    stamp(E, "h2ld")
    dump_regs(E, 16, 16, 48 << 20)
    gemm(E, UT, "w1", 16, vBa, 1024)
    E.nop(8)
    for i in range(64): e(f"v_max_f32 v{vAcc+i}, 0, v{vAcc+i}")
    for np_ in range(2):
        for rt in range(4):
            o = 128 + (np_ * 4 + rt) * 4
            for h in range(2):
                a = vAcc + ((2 * np_ + h) * 4 + rt) * 4
                e(f"v_cvt_pk_bf16_f32 v{o+2*h}, v{a}, v{a+1}")
                e(f"v_cvt_pk_bf16_f32 v{o+2*h+1}, v{a+2}, v{a+3}")
    e("s_barrier")
    for np_ in range(2):
        for rt in range(4):
            e(f"ds_write_b128 v{vFw+np_}, {V(128+(np_*4+rt)*4,4)} offset:{rt*8192}")
    E.wait(lg=0); e("s_barrier")
    stamp(E, "ffn1")
    dump_lds(E, L_V, 32768, 52 << 20)
    gemm(E, UT, "w2", 7, vFr, 512)
    stamp(E, "ffn2")
    E.nop(8)
    publish_partial(E, WS_P2)
    srd(E, SRD_X, P_OUT, 2097152)
    signal(E, 2, "pst")
    stamp(E, "pub2")
    poll(E, 2)
    stamp(E, "poll3")
    load_partials(E, WS_P2)
    sum_partials(E, 184)
    for i in range(8):
        e(f"v_pk_fma_f32 {V(16+2*i,2)}, {V(184+2*i,2)}, {V(32+2*i,2)}, {V(16+2*i,2)}")
        e(f"v_cvt_pk_bf16_f32 v{64+i}, v{16+2*i}, v{17+2*i}")
    for q in range(4):
        e(f"buffer_store_dwordx2 {V(64+2*q,2)}, v{vXo}, {S(SRD_X,4)}, 0 offen offset:{(q>>1)*512+(q&1)*32}")
    if Opt.stamps:
        E.wait(vm=0)
        stamp(E, "end")
        e(f"s_lshl_b32 s{sT}, s2, 2"); e(f"s_add_u32 s{sT}, s{sT}, s{sW}"); e(f"s_lshl_b32 s{sT}, s{sT}, 9")
        e(f"s_add_u32 s{sT}, s{sT}, {WS_STAMP}")
        e(f"v_lshlrev_b32 v254, 2, v{vLane}")
        e(f"buffer_store_dword v{vStC}, v254, {S(SRD_WS,4)}, s{sT} offen")
        e(f"buffer_store_dword v{vStR}, v254, {S(SRD_WS,4)}, s{sT} offen offset:256")
    E.label("L_end")
    e("s_endpgm")
    for lab, t_ in sites:
        E.label(f"L_tr_{lab}")
        e(f"s_call_b64 {S(sRet,2)}, L_rare_{t_&3}")
        e(f"s_branch L_back_{lab}")
    for k in range(4):
        rare(E, k)
    return E


def mod_kernel():
    E = Emit(); e = E.e
    e("s_cmp_ge_u32 s2, 96"); e("s_cbranch_scc1 M_end")
    load_ptrs(E)
    e(f"v_lshrrev_b32 v2, 2, v{vLane}"); e(f"v_and_b32 v3, 3, v{vLane}")
    e(f"v_lshl_add_u32 v2, s{sW}, 7, v2")
    e(f"v_mul_u32_u24 v4, 6144, v2"); e(f"v_lshl_add_u32 v4, v3, 4, v4")
    e(f"v_lshlrev_b32 v5, 1, v2")
    e(f"s_lshl_b32 s{sT}, s2, 6")
    e("s_waitcnt lgkmcnt(0)")
    srd(E, SRD_X, P_WM, 3145728); srd(E, SRD_K, P_C, 1024); srd(E, SRD_WS, P_WS, WS_BYTES)
    for j in range(8):
        e(f"buffer_load_ushort v{8+j}, v5, {S(SRD_K,4)}, 0 offen offset:{32*j}", tag="c")
    for j in range(8):
        e(f"buffer_load_dwordx4 {V(16+4*j,4)}, v4, {S(SRD_X,4)}, s{sT} offen", tag=("w", j))
        if j < 7: e(f"s_add_u32 s{sT}, s{sT}, {16*6144}")
    e(f"s_lshl_b32 s{sT+1}, s2, 10"); e(f"s_add_u32 s{sT+1}, s{sT+1}, {WS_FLAG}")
    e("v_lshlrev_b32 v6, 2, v0"); e("v_mov_b32 v7, 0")
    e(f"buffer_store_dword v7, v6, {S(SRD_WS,4)}, s{sT+1} offen")
    E.wait(vtag="c")
    for j in range(8): e(f"v_lshlrev_b32 v{8+j}, 16, v{8+j}")
    for j in range(8): e(f"v_mul_f32 v{48+j}, {f2u(-math.log2(math.e))}, v{8+j}")
    for j in range(8): e(f"v_exp_f32 v{48+j}, v{48+j}")
    for j in range(8): e(f"v_add_f32 v{48+j}, 1.0, v{48+j}")
    for j in range(8): e(f"v_rcp_f32 v{48+j}, v{48+j}")
    for j in range(8): e(f"v_mul_f32 v{8+j}, v{8+j}, v{48+j}")
    for j in range(8): e(f"v_cvt_pk_bf16_f32 v{8+j}, v{8+j}, v{8+j}")
    for j in range(8): e(f"v_and_b32 v{8+j}, 0xffff0000, v{8+j}")
    for i in range(8): e(f"v_mov_b32 v{48+i}, 0")
    for j in range(8):
        E.wait(vtag=("w", j))
        for r in range(4):
            e(f"v_lshlrev_b32 v56, 16, v{16+4*j+r}"); e(f"v_and_b32 v57, 0xffff0000, v{16+4*j+r}")
            e(f"v_fmac_f32 v{48+2*r}, v56, v{8+j}"); e(f"v_fmac_f32 v{49+2*r}, v57, v{8+j}")
    for sh in (4, 8):
        E.nop(1)
        for i in range(8): e(f"v_add_f32_dpp v{48+i}, v{48+i}, v{48+i} row_ror:{sh} row_mask:0xf bank_mask:0xf")
    for op in ("v_permlane16_swap_b32", "v_permlane32_swap_b32"):
        for i in range(8): e(f"v_mov_b32 v{56+i}, v{48+i}")
        E.nop(1)
        for i in range(8): e(f"{op} v{56+i}, v{48+i}")
        for i in range(8): e(f"v_add_f32 v{48+i}, v{48+i}, v{56+i}")
    e(f"v_lshlrev_b32 v2, 5, v3"); e(f"v_lshl_add_u32 v2, s{sW}, 7, v2")
    e(f"ds_write_b128 v2, v[48:51]"); e(f"ds_write_b128 v2, v[52:55] offset:16")
    E.wait(lg=0); e("s_barrier")
    e(f"v_and_b32 v2, 31, v{vLane}"); e("v_lshlrev_b32 v2, 2, v2")
    for i in range(4): e(f"ds_read_b32 v{8+i}, v2 offset:{128*i}")
    E.wait(lg=0)
    e("v_add_f32 v8, v8, v9"); e("v_add_f32 v10, v10, v11"); e("v_add_f32 v8, v8, v10")
    e("v_cvt_pk_bf16_f32 v8, v8, v8"); e("v_and_b32 v8, 0xffff0000, v8")
    e(f"s_lshr_b32 s{sT}, s2, 4")
    e(f"s_cmp_eq_u32 s{sT}, 1"); e(f"s_cselect_b32 s{sT+1}, 1.0, 0")
    e(f"s_cmp_eq_u32 s{sT}, 4"); e(f"s_cselect_b32 s{sT+1}, 1.0, s{sT+1}")
    e(f"s_cmp_lt_u32 s{sT}, 2"); e(f"s_cselect_b32 s{sT+2}, {f2u(CS)}, 1.0")
    e(f"v_add_f32 v8, s{sT+1}, v8")
    e("v_cvt_pk_bf16_f32 v8, v8, v8"); e("v_and_b32 v8, 0xffff0000, v8")
    e(f"v_mul_f32 v8, s{sT+2}, v8")
    e(f"s_lshl_b32 s{sT}, s2, 7")
    e("v_cmp_gt_u32 vcc, 32, v0"); e("v_mov_b32 v9, 0x40000000"); E.nop(1)
    e("v_cndmask_b32 v2, v9, v2, vcc")
    e(f"buffer_store_dword v8, v2, {S(SRD_WS,4)}, s{sT} offen offset:{WS_MOD}")
    E.label("M_end")
    e("s_endpgm")
    return E


HEAD = open("cdna_kernels/" + NAME + ".s.ref").read().split("; Override launch geometry")[0]


def kd(name, nv, acc, ns=102):
    return f""".amdhsa_kernel {name}
  .amdhsa_next_free_vgpr {nv}
  .amdhsa_next_free_sgpr {ns}
  .amdhsa_accum_offset {acc}
  .amdhsa_group_segment_fixed_size 0
  .amdhsa_kernarg_size 104
  .amdhsa_user_sgpr_count 2
  .amdhsa_user_sgpr_kernarg_segment_ptr 1
  .amdhsa_system_sgpr_workgroup_id_x 1
.end_amdhsa_kernel
"""


def build(path, dump=False, stamps=False, **kw):
    Opt.dump, Opt.stamps = dump, stamps
    Opt.stamp_names = []; _stamp_n[0] = 0
    Opt.code_pf = 2
    for k, v in kw.items():
        setattr(Opt, k, v)
    M = mod_kernel(); K = main_kernel()
    M.L = fix_hazards(M.L); K.L = fix_hazards(K.L)
    bad = check_hazards(M.L) + check_hazards(K.L)
    txt = HEAD
    txt += "; @launch kernel=mod_kernel grid=(96,1,1) block=(256,1,1) lds=512\n"
    txt += f"; @launch kernel=main_kernel grid=(256,1,1) block=(256,1,1) lds={LDS_BYTES}\n"
    txt += '.amdgcn_target "amdgcn-amd-amdhsa--gfx950"\n.text\n'
    for nm, EE in (("mod_kernel", M), ("main_kernel", K)):
        txt += f".globl {nm}\n.p2align 8\n.type {nm},@function\n{nm}:\n" + EE.text()
    txt += '.section .rodata,"a"\n.p2align 6\n' + kd("mod_kernel", 64, 64) + ".p2align 6\n" + kd("main_kernel", 512, 256)
    open(path, "w").write(txt)
    if stamps:
        open(path + ".stamps", "w").write("\n".join(Opt.stamp_names))
    print(path, "bytes", len(txt), "instr", len(K.L), "hazards", len(bad))
    return bad


if __name__ == "__main__":
    build("k_plain.s")
    build("k_dump.s", dump=True)
    build("k_stamp.s", stamps=True)
```

```python
import sys, math, struct
from asmlib import Emit, A, V, S, check_hazards, fix_hazards

NAME = "adaLN_cond__gqa_block_cached__dense_activation_relu__prompt"
MF = "v_mfma_f32_16x16x32_bf16"
CS = math.log2(math.e) / math.sqrt(128.0)


def f2u(x):
    return struct.unpack("<I", struct.pack("<f", x))[0]


WS_MOD = 0
WS_FLAG = 131072
WS_P1 = 1 << 20
WS_H2 = 18 << 20
WS_P2 = 21 << 20
WS_DBG = 40 << 20
WS_STAMP = 100 << 20
WS_BYTES = 268435456
L_K = 0
L_V = 65536
L_X = 131072
LDS_BYTES = 163840
BIAS = 32.0
THR = 64

sW, sG, sC = 3, 32, 33
SRD_X, SRD_K, SRD_V, SRD_WA, SRD_WB, SRD_WS, SRD_WC = 4, 8, 12, 16, 20, 24, 28
sKoff, sVoff, sKVb, sThr, sCnt, sSlA, sSlB = 34, 35, 36, 37, 38, 39, 40
sT = 41
sRet = 50
sSo = 52
P_X, P_K, P_V, P_WQ, P_WO, P_W1, P_W2, P_C, P_WM, P_OUT, P_DBG, P_WS = 64, 66, 68, 70, 72, 76, 78, 80, 82, 84, 86, 88
vLane = 1
vBa = 2
vWq = 6
vHw = 32
vLS = 16
vTrA, vTrB = 48, 56
vAcc = 64
vS, vP, vM, vT = 64, 128, 192, 208
vChk = 212
vKa, vVa, vDK, vDV = 224, 228, 236, 237
vOnes = 240
vWo = 244
vStC, vStR = 0, 15
aO, aQ, aK, aV = 0, 128, 192, 224
aGA, aGB = 128, 192


class Opt:
    dump = False
    stamps = False
    stop = None


def srd(E, base, ptr, nbytes, add=None):
    if add is None:
        E.e(f"s_mov_b32 s{base}, s{ptr}")
        E.e(f"s_mov_b32 s{base+1}, s{ptr+1}")
    else:
        E.e(f"s_add_u32 s{base}, s{ptr}, s{add}")
        E.e(f"s_addc_u32 s{base+1}, s{ptr+1}, 0")
    E.e(f"s_mov_b32 s{base+2}, {nbytes}")
    E.e(f"s_mov_b32 s{base+3}, 0x20000")


_stamp_n = [0]


def stamp(E, name):
    if not Opt.stamps or (Opt.only and name not in Opt.only):
        return
    i = _stamp_n[0]; _stamp_n[0] += 1
    Opt.stamp_names.append(name)
    E.e("s_memtime s[90:91]"); E.e("s_memrealtime s[92:93]"); E.e("s_waitcnt lgkmcnt(0)")
    E.e(f"v_writelane_b32 v{vStC}, s90, {i}"); E.e(f"v_writelane_b32 v{vStR}, s92, {i}")


def stream(E, mf, head, gaps):
    for i, m in enumerate(mf):
        if m is not None:
            E.e(m)
        for x in head[i] + gaps[i]:
            if callable(x):
                x()
            elif isinstance(x, tuple):
                E.e(x[0], tag=x[1])
            else:
                E.e(x)


def slot_m0(slot, extra=0):
    if slot == 0:
        return f"s_add_u32 m0, s{sSlA}, {extra}"
    return f"s_add_u32 m0, s{sSlB}, {(slot-1)*8192+extra}"


class Units:
    def __init__(self, specs):
        self.specs = specs
        self.next = 0

    def items(self):
        if self.next >= len(self.specs):
            return []
        u = self.next; self.next += 1
        kind, i = self.specs[u]
        slot = u % 3
        so = sSo + (u & 1)
        out = []
        tag = (kind, i)
        if kind == "wo" and Opt.wo2:
            p_, u_ = i // 8, i % 8
            out.append([f"s_mov_b32 s{so}, {2*u_*32768+p_*128}", slot_m0(slot)])
            for b in range(8):
                it = [(f"buffer_load_dwordx4 v{vWo64+(b&3)}, {S(SRD_WB,4)}, s{so} offen offset:{(b&3)*1024} lds", tag)]
                if b == 3:
                    it += [slot_m0(slot, 4096), f"s_mov_b32 s{so}, {(2*u_+1)*32768+p_*128}"]
                out.append(it)
        elif kind in ("wq", "wo", "w2"):
            sr, va, step = {"wq": (SRD_WA, vWq, 262144), "wo": (SRD_WB, vWo, 32768), "w2": (SRD_WC, vWo, 32768)}[kind]
            out.append([f"s_mov_b32 s{so}, {i*step}", slot_m0(slot)])
            for b in range(8):
                it = [(f"buffer_load_dwordx4 v{va+b}, {S(sr,4)}, s{so} offen offset:{(b&3)*1024} lds", tag)]
                if b == 3:
                    it.append(slot_m0(slot, 4096))
                out.append(it)
        else:
            out.append([f"s_mov_b32 s{so}, {2*i*114688}", slot_m0(slot)])
            for b in range(8):
                it = [(f"buffer_load_dwordx4 v{vW1d+(b&3)}, {S(SRD_WA,4)}, s{so} offen offset:{(b&3)*1024} lds", tag)]
                if b == 3:
                    it += [slot_m0(slot, 4096), f"s_mov_b32 s{so}, {(2*i+1)*114688}"]
                out.append(it)
        return out

    def slot_of(self, kind, i):
        return self.specs.index((kind, i)) % 3


def emit_items(E, items):
    for it in items:
        for x in it:
            if callable(x):
                x()
            elif isinstance(x, tuple):
                E.e(x[0], tag=x[1])
            else:
                E.e(x)
        if not any(isinstance(x, tuple) for x in it[-1:]):
            E.e("s_nop 0")


vW1tA, vW1tB, vW1d, vBf, vFw = 6, 10, 200, 204, 205
vBl = 213
vWo64 = 252


def g_unit(kind, ks):
    return (kind, ks // 2) if kind == "w1" else (kind, ks)


def abase(kind, ks):
    return {"wq": lambda: (128, 160, 192)[ks % 3], "wo": lambda: (128, 160, 192, 96)[ks & 3],
            "w1": lambda: 16 * ks, "w2": lambda: 32 * ks}[kind]()


def bfrag(kind, ks, rt):
    return V(128 + (ks & 1) * 16 + rt * 4, 4) if kind == "w1" else A(224 + (ks & 1) * 16 + rt * 4, 4)


def g_areads(U, kind, ks):
    if kind == "wo" and Opt.wo2:
        slot = U.slot_of(kind, ks)
        base = vW1tA if slot == 0 else vW1tB
        return [(f"ds_read_b64_tr_b16 {A(abase(kind,ks)+k*16+nt*4+e_*2,2)}, v{base+nt} offset:{(0 if slot < 2 else 8192)+k*4096+e_*1024}", ("A", kind, ks))
                for nt in range(4) for k in range(2) for e_ in range(2)]
    NT = 4 if kind == "w1" else 8
    slot = U.slot_of(*g_unit(kind, ks))
    off = 0 if slot < 2 else 8192
    if kind == "w1":
        base = vW1tA if slot == 0 else vW1tB
        off += (ks & 1) * 4096
    else:
        base = vTrA if slot == 0 else vTrB
    r = []
    for nt in range(NT):
        for e_ in range(2):
            d = abase(kind, ks) + nt * 4 + e_ * 2
            r.append((f"ds_read_b64_tr_b16 {A(d,2)}, v{base+nt} offset:{off+e_*1024}", ("A", kind, ks)))
    return r


def unit_reads(U, kind, u):
    return g_areads(U, kind, 2 * u) + g_areads(U, kind, 2 * u + 1) if kind == "w1" else g_areads(U, kind, u)


def unit_load(E, U, kind, us, refill=True):
    for u in us:
        E.wait(vtag=(kind, u))
        for x in unit_reads(U, kind, u):
            E.e(x[0], tag=x[1])
    if refill:
        E.wait(lg=0)
        for u in us:
            emit_items(E, U.items())


def gemm(E, U, kind, nks, bimg, extra=(), slots=(), late=(), pend0=()):
    NT = 4 if kind == "w1" else 8
    NM = NT * 4
    extra = list(extra); late = list(late)

    def b_reads(ks):
        if bimg == "xor":
            ad = lambda rt: f"v{vBa+(ks&3)} offset:{rt*16384+(ks>>2)*256}"
        elif bimg == "blk":
            ad = lambda rt: f"v{vBl} offset:{rt*16384+ks*512}"
        else:
            ad = lambda rt: f"v{vBf} offset:{rt*8192+ks*512}"
        return [(f"ds_read_b128 {bfrag(kind,ks,rt)}, {ad(rt)}", ("B", ks)) for rt in range(4)]

    def task(ks):
        if kind in ("wq", "wo"):
            la = Opt.la_q if kind == "wq" else 3
            return ((kind, ks + la), g_areads(U, kind, ks + la), True) if ks + la < nks else (None, [], False)
        if kind == "w1" and ks >= 2:
            i, h = (ks - 2) // 2, ks & 1
            return (("w2", i) if h == 0 else None, g_areads(U, "w2", i)[8 * h:8 * h + 8], h == 1)
        return (None, [], False)

    pend = list(pend0)
    for x in b_reads(0):
        E.e(x[0], tag=x[1])
    E.wait(lg=0)
    for ks in range(nks):
        mf = []
        for nt in range(NT):
            for rt in range(4):
                acc = V(vAcc + (nt * 4 + rt) * 4, 4)
                c = "0" if ks == 0 else acc
                mf.append(f"{MF} {acc}, {A(abase(kind,ks)+nt*4,4)}, {bfrag(kind,ks,rt)}, {c}")
        head = [[] for _ in range(NM)]; gaps = [[] for _ in range(NM)]
        un, ar, free = task(ks)
        if un is not None:
            head[0].append(lambda un=un: E.wait(vtag=un))
        free_g = [g for g in range(NM - 1) if g % 4 != 3]
        rd = list(ar) + (b_reads(ks + 1) if ks + 1 < nks else [])
        for g, x in zip(free_g, rd):
            head[g].append(x)
        src = extra if extra else (late if ks >= nks - 3 else [])
        for g in sorted(free_g + free_g[len(rd):]):
            if src:
                x = src.pop(0)
                gaps[g].extend(x if isinstance(x, list) else [x])
        gfree = free_g[len(ar) - 1] + 4 if ar else 0
        for g in range(NM):
            if free and g == min(gfree, NM - 2):
                its = U.items()
                if its:
                    its[0] = [lambda tg=ar[-1][1]: E.wait(ltag=tg)] + its[0]
                    pend.extend(its)
            if pend and not any(isinstance(x, tuple) for x in pend[0]):
                if g % 4 != 3: head[g] = pend.pop(0) + head[g]
            elif pend and (g % 4 == 3 or (len(pend) > 11 and kind != "w1" and g % 4 == 1)):
                head[g] += pend.pop(0)
        if ks + 1 < nks:
            head[NM - 1].insert(0, lambda: E.wait(lg=0))
        stream(E, mf, head, gaps)
    assert not extra and not late
    emit_items(E, pend)


def addr_wdma128(e, dst, stride, permuted, colreg, t):
    e(f"v_lshrrev_b32 v{t}, 4, v{vLane}")
    e(f"v_and_b32 v{t+1}, 15, v{vLane}")
    e(f"v_lshlrev_b32 v{t+2}, 1, v{t}")
    e(f"v_xor_b32 v{t+1}, v{t+1}, v{t+2}")
    e(f"v_mul_u32_u24 v{t}, {stride}, v{t}")
    e(f"v_add_u32 v{t}, s{colreg}, v{t}")
    e(f"v_lshl_add_u32 v{t+2}, v{t+1}, 4, v{t}")
    e(f"v_xor_b32 v{t+1}, 8, v{t+1}")
    e(f"v_lshl_add_u32 v{t+3}, v{t+1}, 4, v{t}")
    for b in range(8):
        G, e_ = b >> 1, b & 1
        k = (16 * e_ + 4 * G) if permuted else 4 * b
        e(f"v_add_u32 v{dst+b}, {k*stride-(b&3)*1024}, v{t+2+(G&1)}")


def addr_tr128(e, t):
    e(f"v_lshrrev_b32 v{t}, 4, v{vLane}")
    e(f"v_bfe_u32 v{t+1}, v{vLane}, 2, 2")
    e(f"v_lshlrev_b32 v{t+2}, 11, v{t}")
    e(f"v_lshl_add_u32 v{t+2}, v{t+1}, 8, v{t+2}")
    e(f"v_and_b32 v{t}, 1, v{t}")
    e(f"v_lshl_add_u32 v{t}, v{t}, 2, v{t+1}")
    e(f"v_bfe_u32 v{t+1}, v{vLane}, 1, 1")
    e(f"v_lshl_add_u32 v{t}, v{t}, 1, v{t+1}")
    e(f"v_lshl_add_u32 v{t+2}, v{t}, 4, v{t+2}")
    e(f"v_and_b32 v{t}, 1, v{vLane}")
    e(f"v_lshl_add_u32 v{t+2}, v{t}, 3, v{t+2}")
    for nt in range(8):
        e(f"v_xor_b32 v{t}, {32*nt}, v{t+2}")
        e(f"v_add_u32 v{vTrA+nt}, s{sSlA}, v{t}")
        e(f"v_add_u32 v{vTrB+nt}, s{sSlB}, v{t}")


def addr_bimg(e, dst, stride_log2, base, t):
    e(f"v_and_b32 v{t}, 15, v{vLane}")
    e(f"v_lshrrev_b32 v{t+1}, 4, v{vLane}")
    e(f"v_xor_b32 v{t+1}, v{t+1}, v{t}")
    e(f"v_lshlrev_b32 v{t}, {stride_log2}, v{t}")
    e(f"v_lshl_add_u32 v{t}, v{t+1}, 4, v{t}")
    e(f"v_add_u32 v{t}, {base}, v{t}")
    for s in range(4):
        e(f"v_xor_b32 v{dst+s}, {64*s}, v{t}")


def addr_kv(e, t):
    e(f"v_lshrrev_b32 v{t}, 4, v{vLane}")
    e(f"v_and_b32 v{t+1}, 15, v{vLane}")
    e(f"v_lshlrev_b32 v{t+3}, 8, v{t}")
    e(f"v_add_u32 v{t+3}, s{sKVb}, v{t+3}")
    e(f"v_lshl_add_u32 v{t+2}, s{sW}, 2, v{t}")
    e(f"v_xor_b32 v{t+2}, v{t+2}, v{t+1}")
    e(f"v_lshl_add_u32 v{vDK}, v{t+2}, 4, v{t+3}")
    e(f"v_mov_b32 v{t+2}, s{sW}")
    e(f"v_and_b32 v{t+2}, 1, v{t+2}")
    e(f"v_lshlrev_b32 v{t+2}, 2, v{t+2}")
    e(f"v_add_lshl_u32 v{t+2}, v{t+2}, v{t}, 1")
    e(f"v_xor_b32 v{t+2}, v{t+2}, v{t+1}")
    e(f"v_lshl_add_u32 v{vDV}, v{t+2}, 4, v{t+3}")
    e(f"v_and_b32 v{t+2}, 3, v{vLane}")
    e(f"v_bfe_u32 v{t+3}, v{vLane}, 2, 2")
    e(f"v_lshl_add_u32 v{t+4}, v{t+3}, 4, v{t+2}")
    e(f"v_xor_b32 v{t+1}, v{t+1}, v{t}")
    e(f"v_lshlrev_b32 v{t+4}, 8, v{t+4}")
    e(f"v_lshl_add_u32 v{t+4}, v{t+1}, 4, v{t+4}")
    for s in range(4):
        e(f"v_xor_b32 v{vKa+s}, {64*s}, v{t+4}")
    e(f"v_lshl_add_u32 v{t+4}, v{t}, 4, v{t+3}")
    e(f"v_lshlrev_b32 v{t+4}, 8, v{t+4}")
    e(f"v_and_b32 v{t}, 1, v{t}")
    e(f"v_lshl_add_u32 v{t}, v{t}, 2, v{t+3}")
    e(f"v_lshrrev_b32 v{t+1}, 1, v{t+2}")
    e(f"v_lshl_add_u32 v{t}, v{t}, 1, v{t+1}")
    e(f"v_lshl_add_u32 v{t+4}, v{t}, 4, v{t+4}")
    e(f"v_and_b32 v{t}, 1, v{t+2}")
    e(f"v_lshl_add_u32 v{t+4}, v{t}, 3, v{t+4}")
    e(f"v_add_u32 v{t+4}, {L_V}, v{t+4}")
    for dt in range(8):
        e(f"v_xor_b32 v{vVa+dt}, {32*dt}, v{t+4}")


def addr_wo64(e, t):
    e(f"v_lshrrev_b32 v{t}, 3, v{vLane}")
    e(f"v_and_b32 v{t+1}, 6, v{t}")
    e(f"v_and_b32 v{t+2}, 7, v{vLane}")
    e(f"v_xor_b32 v{t+1}, v{t+1}, v{t+2}")
    e(f"v_lshlrev_b32 v{t}, 10, v{t}")
    e(f"v_lshl_add_u32 v{t}, v{t+1}, 4, v{t}")
    e(f"v_lshl_add_u32 v{t}, s{sW}, 8, v{t}")
    for b in range(4):
        k = 16 * (b & 1) + 8 * (b >> 1)
        e(f"v_add_u32 v{vWo64+b}, {k*1024-b*1024}, v{t}")


def addr_w1tr(e, t):
    e(f"v_lshrrev_b32 v{t}, 5, v{vLane}")
    e(f"v_bfe_u32 v{t+1}, v{vLane}, 2, 3")
    e(f"v_lshlrev_b32 v{t}, 11, v{t}")
    e(f"v_lshl_add_u32 v{t}, v{t+1}, 7, v{t}")
    e(f"v_and_b32 v{t+1}, 6, v{t+1}")
    e(f"v_bfe_u32 v{t+2}, v{vLane}, 1, 1")
    e(f"v_or_b32 v{t+1}, v{t+1}, v{t+2}")
    e(f"v_lshl_add_u32 v{t}, v{t+1}, 4, v{t}")
    e(f"v_and_b32 v{t+1}, 1, v{vLane}")
    e(f"v_lshl_add_u32 v{t}, v{t+1}, 3, v{t}")
    for nt in range(4):
        e(f"v_xor_b32 v{t+1}, {32*nt}, v{t}")
        e(f"v_add_u32 v{vW1tA+nt}, s{sSlA}, v{t+1}")
        e(f"v_add_u32 v{vW1tB+nt}, s{sSlB}, v{t+1}")


def addr_w1(e, t):
    e(f"v_lshrrev_b32 v{t}, 3, v{vLane}")
    e(f"v_and_b32 v{t+1}, 6, v{t}")
    e(f"v_and_b32 v{t+2}, 7, v{vLane}")
    e(f"v_xor_b32 v{t+1}, v{t+1}, v{t+2}")
    e(f"v_mul_u32_u24 v{t}, 3584, v{t}")
    e(f"v_lshl_add_u32 v{t}, v{t+1}, 4, v{t}")
    e(f"s_mul_i32 s{sT}, s{sG}, 448")
    e(f"s_lshl_b32 s{sT+1}, s{sW}, 7")
    e(f"s_add_u32 s{sT}, s{sT}, s{sT+1}")
    e(f"v_add_u32 v{t}, s{sT}, v{t}")
    e([f"s_cmp_eq_u32 s{sW}, 3", f"s_cselect_b32 s{sT}, 4, 8"])
    e(f"v_cmp_gt_u32 vcc, s{sT}, v{t+1}")
    e(f"v_mov_b32 v{t+2}, 0x40000000")
    e("s_nop 0")
    e(f"v_cndmask_b32 v{t}, v{t+2}, v{t}, vcc")
    for b in range(4):
        k = 16 * (b & 1) + 8 * (b >> 1)
        e(f"v_add_u32 v{vW1d+b}, {k*3584-b*1024}, v{t}")
    addr_blk(e, vBf, 12, t)
    e(f"s_lshl_b32 s{sT}, s{sW}, 10")
    e(f"v_add_u32 v{vFw}, s{sT}, v{vBf}")


def addr_blk(e, dst, bs_log2, t, base=L_V, mul=None):
    e(f"v_bfe_u32 v{t}, v{vLane}, 3, 1")
    e(f"v_lshlrev_b32 v{t}, {bs_log2}, v{t}" if mul is None else f"v_mul_u32_u24 v{t}, {mul}, v{t}")
    e(f"v_and_b32 v{t+1}, 7, v{vLane}")
    e(f"v_lshl_add_u32 v{t}, v{t+1}, 4, v{t}")
    e(f"v_lshrrev_b32 v{t+1}, 4, v{vLane}")
    e(f"v_lshl_add_u32 v{t}, v{t+1}, 7, v{t}")
    e(f"v_add_u32 v{dst}, {base}, v{t}")


def Sreg(par, kt, qt): return vS + par * 32 + (kt * 4 + qt) * 4
def Preg(buf, kg, qt): return vP + buf * 32 + (kg * 4 + qt) * 4
def Lreg(par, qt): return vLS + par * 16 + qt * 4
def Oreg(dt, qt): return aO + (dt * 4 + qt) * 4
def Qreg(qt, s): return aQ + (qt * 4 + s) * 4


def dmaK(n): return f"buffer_load_dwordx4 v{vDK}, {S(SRD_K,4)}, s{sKoff} offen offset:{1024*n} lds"
def dmaV(n): return f"buffer_load_dwordx4 v{vDV}, {S(SRD_V,4)}, s{sVoff} offen offset:{1024*n} lds"


def kv_items(kind, tile):
    slot = tile % 4
    base = slot * 16384 + (L_V if kind == "V" else 0)
    off = sKoff if kind == "K" else sVoff
    f = dmaK if kind == "K" else dmaV
    its = [[(f(n), (kind, tile))] for n in range(4)]
    its[3].append(f"s_add_u32 s{off}, s{off}, 16384")
    return f"s_add_u32 m0, s{sKVb}, {base}", its


def kread(half, kt, s):
    return f"ds_read_b128 {A(aK+kt*16+4*s,4)}, v{vKa+s} offset:{((half//2)%4)*16384+((half%2)*2+kt)*1024}"


def sm_exp(t, qt, kt, r): return f"v_exp_f32 v{vT+r}, v{Sreg(t&1,kt,qt)+r}"
def sm_cvt(t, qt, kt, h): return f"v_cvt_pk_bf16_f32 v{Preg((t//2)&1,t&1,qt)+2*kt+h}, v{vT+2*h}, v{vT+2*h+1}"
def sm_sum(t, qt): return f"{MF} {V(Lreg(t&1,qt),4)}, {V(vOnes,4)}, {V(Preg((t//2)&1,t&1,qt),4)}, {V(Lreg((t&1)^1,qt),4)}"


def stage(E, t, label, vmwait=None, dma=(), fill=None, ard=None):
    par = t & 1
    qk = 1 <= t <= 62
    pv = t >= 2
    smA = t <= 63
    smB = t + 1 <= 63
    mf = []; head = []; gaps = []
    idx = {}

    def add(p, j, m):
        idx[(p, j)] = len(mf); mf.append(m); head.append([]); gaps.append([])
    for p in range(8):
        kt, qt = p // 4, p % 4
        for s in range(4):
            c = V(vM + qt * 4, 4) if s == 0 else V(Sreg(par ^ 1, kt, qt), 4)
            add(p, s, f"{MF} {V(Sreg(par^1,kt,qt),4)}, {A(aK+kt*16+4*s,4)}, {A(Qreg(qt,s),4)}, {c}" if qk else None)
        if smA and p % 2 == 0:
            add(p, "S", sm_sum(t, p // 2))
        dtl = p // 2; dt = 4 * par + dtl
        vb = aV + ((4 * t + dtl) % 4) * 8
        pb = (t // 2 - 1) & 1
        for j in range(4):
            q_ = 2 * (p & 1) + j // 2; kg = j & 1
            add(p, 4 + j, f"{MF} {A(Oreg(dt,q_),4)}, {A(vb+4*kg,4)}, {V(Preg(pb,kg,q_),4)}, {A(Oreg(dt,q_),4)}" if pv else None)
    H = lambda p, j: head[idx[(p, j)]]
    G = lambda p, j: gaps[idx[(p, j)]]
    for p in range(8):
        half, kt = (t + 1, 1) if p < 4 else (t + 2, 0)
        kr = 2 <= half <= 63
        if kr:
            H(p, 0).append((kread(half, kt, p % 4), ("Kf", half % 8, kt)))
        vs = 4 * t + p // 2 + 1
        tt = vs // 4; dt = 4 * (tt & 1) + vs % 4; vt = tt // 2 - 1
        vr = 0 <= vt <= 31
        if vr:
            vb = aV + (vs % 4) * 8; kg = p & 1
            for e_ in range(2):
                H(p, 2 + 2 * e_).append((f"ds_read_b64_tr_b16 {A(vb+4*kg+2*e_,2)}, v{vVa+dt} offset:{(vt%4)*16384+(2*kg+e_)*1024}", ("Vf", vs % 32)))
        if p % 2 == 0 and pv:
            H(p, 3).append(lambda v=(vs - 1) % 32: E.wait(ltag=("Vf", v)))
        if p % 4 == 3:
            ktag = ("Kf", half % 8, kt) if kr else None
            if p == 3 and vmwait is not None:
                H(p, 7).append(lambda k=ktag: E.wait(vm=vmwait(), ltag=k))
                H(p, 7).append("s_barrier")
            elif kr:
                H(p, 7).append(lambda k=ktag: E.wait(ltag=k))
        if ard:
            if p == 0: H(p, 5).append(lambda: E.wait(vtag=ard[0]))
            H(p, 5).append(ard[1][2 * p]); H(p, 7).insert(0, ard[1][2 * p + 1])
        if p < 6:
            on, ts, q_, kt_ = smA, t, 1 + p // 2, p & 1
        else:
            on, ts, q_, kt_ = smB, t + 1, 0, p & 1
        if on:
            for r in range(4):
                G(p, 2 * r + 1).append(sm_exp(ts, q_, kt_, r))
            G(p, 4).append(sm_cvt(ts, q_, kt_, 0))
        if p == 0:
            pon, pts, pq, pk = smA, t, 0, 1
        elif p <= 6:
            pon, pts, pq, pk = smA, t, 1 + (p - 1) // 2, (p - 1) & 1
        else:
            pon, pts, pq, pk = smB, t + 1, 0, 0
        if pon:
            G(p, 0).append(sm_cvt(pts, pq, pk, 1))
            if not qk and p % 2 == 0:
                G(p, 3).append("s_nop 0")
    if smA and label is not None:
        G(6, "S").append(f"v_max3_f32 v{vChk}, v{Lreg(par,0)}, v{Lreg(par,1)}, v{Lreg(par,2)}")
        if pv and qk:
            G(7, 2).append(f"v_max_f32 v{vChk}, v{vChk}, v{Lreg(par,3)}")
        else:
            G(7, 5).append("s_nop 3")
            G(7, 5).append(f"v_max_f32 v{vChk}, v{vChk}, v{Lreg(par,3)}")
        G(7, 6).append(f"v_cmp_ngt_f32 vcc, s{sThr}, v{vChk}")
        G(7, 7).append(f"s_cbranch_vccnz L_tr_{label}")
        G(7, 7).append(lambda: E.label(f"L_back_{label}"))
    for p, fl in (fill or {}).items():
        n = (len(fl) + 3) // 4
        for j in range(4):
            G(p, 4 + j).extend(fl[j * n:(j + 1) * n])
    for (p, pre, it) in dma:
        if pre is not None:
            H(p, 5).append(pre)
            if not pv: H(p, 5).append("s_nop 0")
        H(p, 6).extend(it)
    stream(E, mf, head, gaps)


def kv_plan(t):
    d = []
    if t % 2 == 0:
        i = t // 2 + 1
        if i + 2 <= 31:
            m0, its = kv_items("K", i + 2)
            d += [(4 + n, m0 if n == 0 else None, its[n]) for n in range(4)]
    else:
        i = (t + 1) // 2
        if i + 1 <= 31:
            m0, its = kv_items("V", i + 1)
            d += [(2 * n, m0 if n == 0 else None, its[n]) for n in range(4)]
    return d


def rowmax_all(E, x, tmp):
    for op in ("v_permlane32_swap_b32", "v_permlane16_swap_b32"):
        E.e(f"v_mov_b32 v{tmp}, v{x}"); E.nop(2)
        E.e(f"{op} v{tmp}, v{x}"); E.nop(1)
        E.e(f"v_max_f32 v{x}, v{x}, v{tmp}")


def rare(E, k):
    t = k; par = t & 1
    tm = 216
    E.label(f"L_rare_{k}")
    E.nop(16)
    for qt in range(4):
        d, f = tm, tm + 1
        a, b = Sreg(par, 0, qt), Sreg(par, 1, qt)
        E.e(f"v_log_f32 v{d}, v{Lreg(par^1,qt)}")
        E.e(f"v_max3_f32 v{f}, v{a}, v{a+1}, v{a+2}")
        E.e(f"v_max3_f32 v{f}, v{f}, v{a+3}, v{b}")
        E.e(f"v_max3_f32 v{f}, v{f}, v{b+1}, v{b+2}")
        E.e(f"v_max3_f32 v{d}, v{d}, v{f}, v{b+3}")
        rowmax_all(E, d, f)
        E.e(f"v_ceil_f32 v{d}, v{d}")
        E.e(f"v_add_f32 v{d}, {f2u(Opt.bias)}, v{d}")
        E.e(f"v_max_f32 v{d}, 0, v{d}")
        E.e(f"v_exp_f32 v{f}, -v{d}")
        for i in range(4):
            E.e(f"v_sub_f32 v{vM+qt*4+i}, v{vM+qt*4+i}, v{d}")
        for pp in range(2):
            for kt in range(2):
                for i in range(4):
                    r = Sreg(pp, kt, qt) + i
                    E.e(f"v_sub_f32 v{r}, v{r}, v{d}")
        for i in range(4):
            r = Lreg(par ^ 1, qt) + i
            E.e(f"v_mul_f32 v{r}, v{r}, v{f}")
        for dt in range(8):
            for i in range(4):
                E.e(f"v_accvgpr_read_b32 v{tm+2+i}, a{Oreg(dt,qt)+i}")
            for i in range(4):
                E.e(f"v_mul_f32 v{tm+2+i}, v{tm+2+i}, v{f}")
            for i in range(4):
                E.e(f"v_accvgpr_write_b32 a{Oreg(dt,qt)+i}, v{tm+2+i}")
        u = t // 2
        pend = [((u - 1) & 1, 0), ((u - 1) & 1, 1)] if par == 0 else [(u & 1, 0)]
        for (buf, kg) in pend:
            for i in range(4):
                r = Preg(buf, kg, qt) + i
                E.e(f"v_lshlrev_b32 v{tm+2}, 16, v{r}")
                E.e(f"v_and_b32 v{tm+3}, 0xffff0000, v{r}")
                E.e(f"v_mul_f32 v{tm+2}, v{tm+2}, v{f}")
                E.e(f"v_mul_f32 v{tm+3}, v{tm+3}, v{f}")
                E.e(f"v_cvt_pk_bf16_f32 v{r}, v{tm+2}, v{tm+3}")
        for kt in range(2):
            for r in range(4):
                E.e(sm_exp(t, qt, kt, r))
            E.nop(1)
            E.e(sm_cvt(t, qt, kt, 0)); E.e(sm_cvt(t, qt, kt, 1))
        E.nop(2)
        E.e(sm_sum(t, qt))
    for kt in range(2):
        for r in range(4):
            E.e(sm_exp(t + 1, 0, kt, r))
        E.nop(1)
        E.e(sm_cvt(t + 1, 0, kt, 0))
        if kt == 0:
            E.e(sm_cvt(t + 1, 0, kt, 1))
    E.nop(12)
    E.e(f"s_setpc_b64 {S(sRet,2)}")


def emit1(E, x):
    if callable(x): x()
    elif isinstance(x, tuple): E.e(x[0], tag=x[1])
    elif isinstance(x, list):
        for y in x: emit1(E, y)
    else: E.e(x)


def interleave(E, mf, fill, per=2):
    fill = list(fill)
    for m in mf:
        E.e(m)
        for _ in range(per):
            if fill: emit1(E, fill.pop(0))
    return fill


def q_convert(qt):
    out = []
    for sp in range(2):
        o = [192 + ((2 * qt + sp) & 1) * 8 + 4 * k for k in range(2)]
        for k in range(2):
            s = 2 * sp + k
            for h in range(2):
                a = vAcc + ((2 * s + h) * 4 + qt) * 4
                out.append(f"v_cvt_pk_bf16_f32 v{o[k]+2*h}, v{a}, v{a+1}")
                out.append(f"v_cvt_pk_bf16_f32 v{o[k]+2*h+1}, v{a+2}, v{a+3}")
        for op in ("v_permlane32_swap_b32", "v_permlane16_swap_b32"):
            for k in range(2):
                out.append(f"{op} v{o[k]}, v{o[k]+2}"); out.append(f"{op} v{o[k]+1}, v{o[k]+3}")
        for k in range(2):
            for i in range(4):
                out.append(f"v_accvgpr_write_b32 a{Qreg(qt,2*sp+k)+i}, v{o[k]+i}")
    return out


def ref_max(qt, tm):
    m, t = tm + 2 * (qt & 1), tm + 2 * (qt & 1) + 1
    r = [Sreg(p, kt, qt) + i for p in range(2) for kt in range(2) for i in range(4)]
    out = [f"v_max3_f32 v{m}, v{r[0]}, v{r[1]}, v{r[2]}"]
    for i in range(3, 15, 2): out.append(f"v_max3_f32 v{m}, v{m}, v{r[i]}, v{r[i+1]}")
    out.append(f"v_max_f32 v{m}, v{m}, v{r[15]}")
    for op in ("v_permlane32_swap_b32", "v_permlane16_swap_b32"):
        out += [f"v_mov_b32 v{t}, v{m}", f"{op} v{t}, v{m}", f"v_max_f32 v{m}, v{m}, v{t}"]
    out.append(f"v_ceil_f32 v{m}, v{m}")
    for i in range(4): out.append(f"v_sub_f32 v{vM+qt*4+i}, {f2u(-Opt.bias)}, v{m}")
    for x in r: out.append(f"v_add_f32 v{x}, v{x}, v{vM+qt*4}")
    return out


def merge(a, b):
    out = []
    while a or b:
        if a: out.append(a.pop(0))
        if b: out.append(b.pop(0))
    return out


def o_out(qt, s):
    return vP + (qt * 2 + s) * 4 if s < 2 else vS + 16 * (s - 1) + qt * 4


def o_piece(qt, s, packed):
    tm = 216
    b = vS + (qt & 1) * 8
    out = []
    for h in range(2):
        for i in range(4):
            out.append(f"v_accvgpr_read_b32 v{b+4*h+i}, a{Oreg(2*s+h,qt)+i}")
    if packed:
        for i in range(4):
            out.append(f"v_pk_mul_f32 {V(b+2*i,2)}, {V(b+2*i,2)}, {V(tm+(qt&~1),2)} op_sel:[0,{qt&1}] op_sel_hi:[1,{qt&1}]")
    else:
        for i in range(8):
            out.append(f"v_mul_f32 v{b+i}, v{b+i}, v{tm+qt}")
    o = o_out(qt, s)
    for i in range(4):
        out.append(f"v_cvt_pk_bf16_f32 v{o+i}, v{b+2*i}, v{b+2*i+1}")
    return out


def attention(E, U):
    tm = 216
    E.e(f"s_mov_b32 s{sKoff}, 0"); E.e(f"s_mov_b32 s{sVoff}, 0")
    dm = []
    for kind, tile in (("K", 0), ("K", 1), ("V", 0), ("K", 2), ("V", 1)):
        m0, its = kv_items(kind, tile)
        its[0] = [m0, "s_nop 0"] + its[0]
        dm += its
    for it in dm[:4]: emit1(E, it)
    cv = q_convert(0) + q_convert(1)
    for n, x in enumerate(cv):
        E.e(x)
        if n % 4 == 3 and n // 4 + 4 < len(dm): emit1(E, dm[n // 4 + 4])
        if n == 63:
            stamp(E, "p_cv")
            E.wait(vtag=("K", 0)); E.e("s_barrier")
            stamp(E, "p_k0")
            for sub in range(4):
                for s_ in range(4):
                    if sub == 3 and s_ == 0: E.wait(ltag=("k0", 0))
                    E.e(f"ds_read_b128 {A(aK+sub*16+4*s_,4)}, v{vKa+s_} offset:{sub*1024}", tag=("k0", sub))
    dump_q = Opt.dump
    E.e(f"s_mov_b32 s{sThr}, {hex((127+Opt.thr) << 23)}")
    E.wait(lg=0)

    def qk(qt):
        return [f"{MF} {V(Sreg(sub>>1,sub&1,qt),4)}, {A(aK+sub*16+4*s_,4)}, {A(Qreg(qt,s_),4)}, " + ("0" if s_ == 0 else V(Sreg(sub >> 1, sub & 1, qt), 4))
                for sub in range(4) for s_ in range(4)]
    stamp(E, "p_rd")
    f = interleave(E, qk(0), q_convert(2), per=3)
    f = interleave(E, qk(1), f + q_convert(3), per=3)
    assert not f
    f = interleave(E, qk(2), [f"v_mov_b32 v{Lreg(1,0)+i}, 0" for i in range(8)] + ref_max(0, tm), per=3)
    f = interleave(E, qk(3), f + [f"v_mov_b32 v{Lreg(1,2)+i}, 0" for i in range(8)] + ref_max(1, tm), per=3)
    stamp(E, "p_qk")
    for x in f + merge(ref_max(2, tm), ref_max(3, tm)): E.e(x)
    if dump_q: dump_regs(E, aQ, 64, 16 << 20, acc=True)
    for kt in range(2):
        for r in range(4): E.e(sm_exp(0, 0, kt, r))
        E.e(sm_cvt(0, 0, kt, 0))
        if kt == 0: E.e(sm_cvt(0, 0, kt, 1))
    stamp(E, "attn_pro")
    sites = []
    d0 = [(4, f"buffer_store_dwordx2 v[238:239], v214, {S(SRD_WS,4)}, 0 offen sc0 sc1", [])] + kv_plan(0)
    stage(E, 0, None, vmwait=lambda: E.vm_n(("V", 0)), dma=d0)
    addr_w1tr(E.e, 220)
    stage(E, 1, None, dma=kv_plan(1))
    stamp(E, "st01")
    E.e(f"s_mov_b32 s{sCnt}, 7")
    E.raw(".p2align 6")
    E.label("L_loop")
    for t in range(2, 10):
        stage(E, t, f"m{t}", vmwait=(lambda: 8) if t % 2 == 0 else None, dma=kv_plan(t)); sites.append((f"m{t}", t))
    E.e(f"s_sub_u32 s{sCnt}, s{sCnt}, 1"); E.e(f"s_cmp_lg_u32 s{sCnt}, 0"); E.e("s_cbranch_scc1 L_loop")
    E.vtag[("V", 29)] = E.vm - 8; E.vtag[("V", 30)] = E.vm
    for t in range(58, 66):
        if t in (58, 62, 63, 64, 65): stamp(E, f"to{t}")
        d = kv_plan(t)
        if t == 58 and Opt.tt: d = [(4, (lambda: touches_tail(E, "wo")), [])] + d
        if t == Opt.tt2 and Opt.tt: d = [(4, (lambda: touches_tail(E, "ffn")), [])] + d
        if t in (60, 62, 63, 64, 65):
            its = U.items()
            pairs = [4, 4, 5, 5, 6, 6, 7, 7] if t < 63 else list(range(8))
            pre = its[0]
            if t >= 64: pre = [lambda k=t - 64: E.wait(ltag=("A", "wo", k))] + pre
            for b in range(8):
                it = list(its[1 + b])
                if b == 0: it = pre + ["s_nop 0"] + it
                if b == 3 and pairs[4] == pairs[3]: it.append("s_nop 0")
                d.append((pairs[b], None, it))
        vw = None
        if t in (58, 60, 62):
            vw = lambda t=t: E.vm_n(("V", t // 2))
        fl = None
        if t == 64:
            fl = {0: ["s_setreg_imm32_b32 hwreg(HW_REG_MODE, 4, 2), 3", f"s_lshl_b32 s{sT}, s{sW}, 11", f"v_add_u32 v{vT}, s{sT}, v{vBl}"],
                  2: [f"v_rcp_f32 v{tm+qt}, v{Lreg(1,qt)}" for qt in range(4)]}
            for qt in range(4): fl[4 + qt] = o_piece(qt, 0, False)
        if t == 65:
            fl = {p: o_piece(p & 3, 1 + p // 4, False) for p in range(8)}
        stage(E, t, f"e{t}" if t <= 63 else None, vmwait=vw, dma=d, fill=fl,
              ard=(("wo", t - 63), g_areads(U, "wo", t - 63)) if t >= 63 else None)
        if t <= 63: sites.append((f"e{t}", t))
    stamp(E, "attn_loop")
    E.wait(lg=0)
    E.e("s_barrier")
    for s in range(3):
        for qt in range(4):
            E.e(f"ds_write_b128 v{vT}, {V(o_out(qt,s),4)} offset:{qt*16384+s*512}")
    for qt in range(4):
        for x in o_piece(qt, 3, True): E.e(x)
        E.e(f"ds_write_b128 v{vT}, {V(o_out(qt,3),4)} offset:{qt*16384+3*512}")
    E.e("s_setreg_imm32_b32 hwreg(HW_REG_MODE, 4, 2), 0")
    E.wait(lg=0)
    E.e("s_barrier")
    return sites


vFl = 210
vPst = 214
vPld = 215


def addr_xchg(e, t):
    e(f"s_mul_i32 s{sT}, s{sC}, 3072")
    e(f"s_add_u32 s{sT}, s{sT}, {WS_FLAG}")
    e(f"s_lshl_b32 s{sT+1}, s{sG}, 2")
    e(f"s_add_u32 s{sT+1}, s{sT+1}, s{sT}")
    e(f"v_lshlrev_b32 v{t}, 7, v{vLane}")
    e(f"v_add_u32 v{t}, s{sT+1}, v{t}")
    e(f"v_cmp_gt_u32 vcc, 8, v{vLane}")
    e(f"v_mov_b32 v{t+1}, 0x40000000")
    e(f"s_lshl_b32 s{sT+1}, s{sG}, 7")
    e(f"v_cndmask_b32 v{vFl}, v{t+1}, v{t}, vcc")
    e(f"s_add_u32 s{sT+1}, s{sT+1}, s{sT}")
    e(f"v_and_b32 v{t}, 7, v{vLane}")
    e(f"v_lshl_add_u32 v{vFl+1}, v{t}, 2, s{sT+1}")
    if Opt.plsc == "atomic":
        e(f"v_cndmask_b32 v{vFl+1}, v{t+1}, v{vFl+1}, vcc")
    e(f"v_mov_b32 v{vFl+2}, s{sNonce}")
    addr_blk(e, vPst, 0, t, base=0, mul=65536 + Opt.pad)
    e(f"s_lshl_b32 s{sT}, s{sW}, 11")
    e(f"v_add_u32 v{vPst}, s{sT}, v{vPst}")
    e(f"v_lshl_add_u32 v{vPld}, v{vLane}, 4, s{sT}")


def touch_partials(e):
    e(f"s_lshl_b32 s{sT}, s{sC}, 3"); e(f"s_add_u32 s{sT}, s{sT}, s{sG}"); e(f"s_lshl_b32 s{sT+1}, s{sT}, 16")
    e(f"s_add_u32 s{sT+1}, s{sT+1}, {WS_P1}")
    e(f"v_lshlrev_b32 v239, 7, v{vLane}"); e(f"v_lshl_add_u32 v239, s{sW}, 14, v239")
    e(f"buffer_load_dword v238, v239, {S(SRD_WS,4)}, s{sT+1} offen")
    e(f"s_add_u32 s{sT+1}, s{sT+1}, 8192")
    e(f"buffer_load_dword v238, v239, {S(SRD_WS,4)}, s{sT+1} offen")
    e(f"s_lshl_b32 s{sT+1}, s{sT}, 13"); e(f"s_add_u32 s{sT+1}, s{sT+1}, {WS_H2}")
    e(f"v_lshlrev_b32 v239, 7, v{vLane}")
    e(f"buffer_load_dword v238, v239, {S(SRD_WS,4)}, s{sT+1} offen")


def publish_partial(E, wsbase):
    E.e(f"s_mul_i32 s{sT}, s{sC}, {8*(65536+Opt.pad)}")
    E.e(f"s_lshl_b32 s{sT+1}, s{sG}, 13")
    E.e(f"s_add_u32 s{sT}, s{sT}, s{sT+1}")
    for rt in range(4):
        E.e(f"s_add_u32 s{sT+1+rt}, s{sT}, {wsbase+rt*2*(65536+Opt.pad)}")
    E.nop(4)
    n = 0
    for np_ in range(4):
        for rt in range(4):
            o = 216 + (n % 6) * 4; n += 1
            for h in range(2):
                a = vAcc + ((2 * np_ + h) * 4 + rt) * 4
                E.e(f"v_cvt_pk_bf16_f32 v{o+2*h}, v{a}, v{a+1}")
                E.e(f"v_cvt_pk_bf16_f32 v{o+2*h+1}, v{a+2}, v{a+3}")
            E.e(f"buffer_store_dwordx4 {V(o,4)}, v{vPst}, {S(SRD_WS,4)}, s{sT+1+rt} offen offset:{np_*512}{Opt.stsc}", tag="pst")


def piece_out(np_, rt, o):
    r = []
    for h in range(2):
        a = vAcc + ((2 * np_ + h) * 4 + rt) * 4
        r += [f"v_cvt_pk_bf16_f32 v{o+2*h}, v{a}, v{a+1}", f"v_cvt_pk_bf16_f32 v{o+2*h+1}, v{a+2}, v{a+3}"]
    r.append((f"buffer_store_dwordx4 {V(o,4)}, v{vPst}, {S(SRD_WS,4)}, s{sT+1+rt} offen offset:{np_*512}{Opt.stsc}", "pst"))
    return r


def wo_two_pass(E, U, extra, late, pend0):
    extra = list(extra); late = list(late); pend = list(pend0)
    bf = lambda st, k, rt: (A(224 + k * 16 + rt * 4, 4) if st & 1 == 0 else V(16 + k * 16 + rt * 4, 4))
    brd = lambda st: [(f"ds_read_b128 {bf(st,k,rt)}, v{vBl} offset:{rt*16384+(2*(st%8)+k)*512}", ("B", st)) for rt in range(4) for k in range(2)]
    for x in brd(0): E.e(x[0], tag=x[1])
    E.wait(lg=0)
    hold = []
    outs = [(np_, rt) for np_ in range(2) for rt in range(4)]
    for st in range(16):
        p_, u_ = st // 8, st % 8
        mf = []
        for nt in range(4):
            for rt in range(4):
                acc = V(vAcc + ((4 * p_ + nt) * 4 + rt) * 4, 4)
                for k in range(2):
                    mf.append(f"{MF} {acc}, {A(abase('wo',st)+k*16+nt*4,4)}, {bf(st,k,rt)}, " + ("0" if u_ == 0 and k == 0 else acc))
        head = [[] for _ in range(32)]; gaps = [[] for _ in range(32)]
        free_g = [g for g in range(31) if g % 4 != 3]
        ar = g_areads(U, "wo", st + 3) if st + 3 < 16 else []
        br = brd(st + 1) if st + 1 < 16 else []
        for g, x in zip(free_g, br + ar):
            if ar and x is ar[0]: head[g].append(lambda st=st: E.wait(vtag=("wo", st + 3)))
            head[g].append(x)
        if st in Opt.wost:
            for n in range(4):
                o_ = piece_out(*outs.pop(0), 224 + n * 4)
                for i, g in enumerate((8 * n, 8 * n + 1, 8 * n + 2, 8 * n + 4)): gaps[g].append(o_[i])
                head[8 * n + 7].append(o_[4])
        else:
            src = extra if extra else (late if st >= 13 else [])
            for g in sorted(free_g + free_g[len(br + ar):]):
                if src:
                    x = src.pop(0)
                    gaps[g].extend(x if isinstance(x, list) else [x])
        for g in range(32):
            if pend and not any(isinstance(x, tuple) for x in pend[0]):
                if g % 4 != 3: head[g] = pend.pop(0) + head[g]
            elif pend and g % 4 == 3 and not head[g]:
                head[g] += pend.pop(0)
        if st + 1 < 16:
            head[31].insert(0, lambda st=st: E.wait(ltag=("B", st + 1)))
        stream(E, mf, head, gaps)
        if ar:
            its = U.items()
            its[0] = [lambda tg=ar[-1][1]: E.wait(ltag=tg)] + its[0]
            pend.extend(its)
    assert not extra and not late and not outs
    emit_items(E, pend)
    E.wait(vtag="xr")


def partial_bases(e, wsbase):
    e(f"s_mul_i32 s{sT}, s{sC}, {8*(65536+Opt.pad)}")
    e(f"s_lshl_b32 s{sT+1}, s{sG}, 13")
    e(f"s_add_u32 s{sT}, s{sT}, s{sT+1}")
    for rt in range(4):
        e(f"s_add_u32 s{sT+1+rt}, s{sT}, {wsbase+rt*2*(65536+Opt.pad)}")


def ffn2(E, wsbase):
    def bf(ks, rt):
        i = rt * 7 + ks
        return A(224 + 4 * i, 4) if i < 8 else V(128 + 4 * (i - 8), 4) if i < 26 else V(216 + 4 * (i - 26), 4)
    brd = lambda rt: [(f"ds_read_b128 {bf(ks,rt)}, v{vBf} offset:{rt*8192+ks*512}", ("B2", rt)) for ks in range(7)]
    acc = lambda np_, h, rt: vAcc + (np_ & 1) * 32 + (rt * 2 + h) * 4

    def out(np_, rt):
        o = 224 + rt * 4
        r = []
        for h in range(2):
            a = acc(np_, h, rt)
            r += [f"v_cvt_pk_bf16_f32 v{o+2*h}, v{a}, v{a+1}", f"v_cvt_pk_bf16_f32 v{o+2*h+1}, v{a+2}, v{a+3}"]
        r.append((f"buffer_store_dwordx4 {V(o,4)}, v{vPst}, {S(SRD_WS,4)}, s{sT+1+rt} offen offset:{np_*512}{Opt.stsc}", "pst"))
        return r
    for x in brd(0): E.e(x[0], tag=x[1])
    partial_bases(E.e, wsbase)
    E.wait(lg=0)
    prev = None
    for np_ in range(4):
        for rt in range(4):
            mf = [f"{MF} {V(acc(np_,h,rt),4)}, {A(32*ks+(2*np_+h)*4,4)}, {bf(ks,rt)}, " + ("0" if ks == 0 else V(acc(np_, h, rt), 4))
                  for h in range(2) for ks in range(7)]
            head = [[] for _ in mf]; gaps = [[] for _ in mf]
            if np_ == 0 and rt < 3:
                for i, x in enumerate(brd(rt + 1)): head[i].append(x)
                head[13].append(lambda: E.wait(lg=0))
            if prev is not None:
                for i, x in enumerate(out(*prev)): gaps[7 + i].append(x)
            stream(E, mf, head, gaps)
            prev = (np_, rt)
    E.nop(6)
    for x in out(*prev): emit1(E, x)


def signal(E, phase, tag):
    E.wait(vtag=tag); E.e("s_barrier")
    E.e(f"s_cmp_lg_u32 s{sW}, 0"); E.e(f"s_cbranch_scc1 L_nosig{phase}")
    E.raw(f" buffer_store_dword v{vFl+2}, v{vFl}, {S(SRD_WS,4)}, 0 offen offset:{phase*1024}{Opt.stsc}")
    E.label(f"L_nosig{phase}")
    stamp(E, f"sig{phase}")


def poll(E, phase, pw, others=None):
    t = 238
    if others:
        E.e(f"s_cmp_eq_u32 s{sW}, {pw}"); E.e(f"s_cbranch_scc1 L_pollw{phase}")
        for x in others: E.raw(" " + x)
        E.e(f"s_branch L_pollx{phase}")
        E.label(f"L_pollw{phase}")
    else:
        E.e(f"s_cmp_lg_u32 s{sW}, {pw}"); E.e(f"s_cbranch_scc1 L_pollx{phase}")
    E.e(f"s_mov_b32 s{sCnt}, 0x100000")
    E.label(f"L_poll{phase}")
    if Opt.plsc == "atomic":
        E.raw(f" v_mov_b32 v{t}, 0")
        E.raw(f" buffer_atomic_or v{t}, v{vFl+1}, {S(SRD_WS,4)}, 0 offen offset:{phase*1024} sc0{Opt.atsc}")
    else:
        E.raw(f" buffer_load_dword v{t}, v{vFl+1}, {S(SRD_WS,4)}, 0 offen offset:{phase*1024}{Opt.plsc}")
    E.e(f"s_sub_u32 s{sCnt}, s{sCnt}, 1")
    E.e(f"s_cbranch_scc1 L_pollx{phase}")
    E.raw(" s_waitcnt vmcnt(0)")
    if Opt.plsc == "atomic":
        E.e(f"v_cmp_ne_u32 vcc, s{sNonce}, v{t}"); E.e("s_and_b32 vcc_lo, vcc_lo, 0xff"); E.e(f"s_cbranch_scc1 L_poll{phase}")
    else:
        E.e(f"v_cmp_ne_u32 vcc, s{sNonce}, v{t}")
        E.e(f"s_cbranch_vccnz L_poll{phase}")
    E.label(f"L_pollx{phase}")
    E.e("s_barrier")


def load_partials(E, wsbase):
    E.e(f"s_lshl_b32 s{sT}, s{sC}, 3"); E.e(f"s_add_u32 s{sT}, s{sT}, s{sG}"); E.e(f"s_mul_i32 s{sT}, s{sT}, {65536+Opt.pad}")
    E.e(f"s_add_u32 s{sT}, s{sT}, {wsbase}")
    for src in range(8):
        for pc in range(2):
            E.e(f"buffer_load_dwordx4 {V(64+(src*2+pc)*4,4)}, v{vPld}, {S(SRD_WS,4)}, s{sT} offen offset:{pc*1024}{Opt.ldsc}", tag=("pl", src))
        if src < 7:
            E.e(f"s_add_u32 s{sT}, s{sT}, 8192")


def sum_partials(E, dst):
    t = 216
    for src in range(8):
        E.wait(vtag=("pl", src))
        for i in range(8):
            r = 64 + src * 8 + i
            if src == 0:
                E.e(f"v_lshlrev_b32 v{dst+2*i}, 16, v{r}")
                E.e(f"v_and_b32 v{dst+2*i+1}, 0xffff0000, v{r}")
            else:
                b = t + (i & 3) * 2
                E.e(f"v_lshlrev_b32 v{b}, 16, v{r}")
                E.e(f"v_and_b32 v{b+1}, 0xffff0000, v{r}")
                E.e(f"v_pk_add_f32 {V(dst+2*i,2)}, {V(dst+2*i,2)}, {V(b,2)}")


def allred8(E, x, tmp):
    E.nop(2)
    E.e(f"v_add_f32_dpp v{x}, v{x}, v{x} row_ror:8 row_mask:0xf bank_mask:0xf")
    for op in ("v_permlane16_swap_b32", "v_permlane32_swap_b32"):
        E.e(f"v_mov_b32 v{tmp}, v{x}"); E.nop(2)
        E.e(f"{op} v{tmp}, v{x}"); E.nop(1)
        E.e(f"v_add_f32 v{x}, v{x}, v{tmp}")


def load_ptrs(E):
    E.e("s_load_dwordx16 s[64:79], s[0:1], 0")
    E.e("s_load_dwordx8 s[80:87], s[0:1], 64")
    E.e("s_load_dwordx2 s[88:89], s[0:1], 96")
    E.e(f"v_lshrrev_b32 v2, 6, v0"); E.e(f"v_and_b32 v{vLane}, 63, v0")
    E.e(f"v_readfirstlane_b32 s{sW}, v2")


def dump_regs(E, first, n, region, acc=False):
    if not Opt.dump:
        return
    E.nop(16)
    E.e(f"s_lshl_b32 s{sT}, s2, 2"); E.e(f"s_add_u32 s{sT}, s{sT}, s{sW}")
    E.e(f"s_mul_i32 s{sT}, s{sT}, {n*256}"); E.e(f"s_add_u32 s{sT}, s{sT}, {WS_DBG+region}")
    E.e(f"v_lshlrev_b32 v220, 2, v{vLane}")
    for i in range(n):
        r = A(first + i) if acc else V(first + i)
        E.e(f"buffer_store_dword {r}, v220, {S(SRD_WS,4)}, s{sT} offen")
        E.e(f"s_add_u32 s{sT}, s{sT}, 256")
    E.wait(vm=0)


def dump_lds(E, base, nbytes, region):
    if not Opt.dump:
        return
    E.e(f"s_mul_i32 s{sT}, s2, {nbytes}"); E.e(f"s_add_u32 s{sT}, s{sT}, {WS_DBG+region}")
    E.e(f"v_lshlrev_b32 v220, 2, v0"); E.e(f"v_add_u32 v221, {base}, v220")
    for i in range(nbytes // 1024):
        E.e(f"ds_read_b32 v222, v221 offset:{i*1024}"); E.wait(lg=0)
        E.e(f"buffer_store_dword v222, v220, {S(SRD_WS,4)}, s{sT} offen"); E.wait(vm=0)
        E.e(f"s_add_u32 s{sT}, s{sT}, 1024")
    E.e("s_barrier")


SRD_D, SRD_T = 56, 60
vTid = 17
NOWN = 192
sCb, sKh = 95, 96
sJr = 97
sCl = 101
MOD_HALF = 1024 * 8


def owner_loads(E, base):
    e = E.raw
    e(f" s_and_b32 s{sCb}, s2, 7"); e(f" s_lshl_b32 s{sCb}, s{sCb}, 1"); e(f" s_bfe_u32 s{sT+3}, s2, 0x10003")
    e(f" s_or_b32 s{sCb}, s{sCb}, s{sT+3}"); e(f" s_and_b32 s{sT+3}, s2, 0x10"); e(f" s_or_b32 s{sCb}, s{sCb}, s{sT+3}")
    e(f" s_bfe_u32 s{sKh}, s2, 0x10005")
    e(f" s_lshl_b32 s{sT+3}, s{sKh}, 2"); e(f" s_add_u32 s{sT+3}, s{sT+3}, s{sW}")
    e(f" v_lshrrev_b32 v24, 2, v{vLane}"); e(f" v_and_b32 v25, 3, v{vLane}")
    e(f" v_lshl_add_u32 v24, s{sT+3}, 6, v24")
    e(f" v_mul_u32_u24 v26, 6144, v24"); e(f" v_lshl_add_u32 v26, v25, 4, v26")
    e(f" v_lshlrev_b32 v27, 1, v24")
    e(f" s_lshl_b32 s{sT+3}, s{sCb}, 6")
    srd(E, SRD_T, P_WM, 3145728)
    for j in range(4):
        e(f" buffer_load_dwordx4 {V(base+4+4*j,4)}, v26, {S(SRD_T,4)}, s{sT+3} offen")
        if j < 3: e(f" s_add_u32 s{sT+3}, s{sT+3}, {16*6144}")
    srd(E, SRD_T, P_C, 1024)
    for j in range(4):
        e(f" buffer_load_ushort v{base+j}, v27, {S(SRD_T,4)}, 0 offen offset:{32*j}")


def owner_gemv(E, nm, base, wk, midx):
    e = E.raw
    c_, w_, a_, t_ = base, base + 4, wk, wk + 8
    for j in range(4): e(f" v_lshlrev_b32 v{c_+j}, 16, v{c_+j}")
    for j in range(4): e(f" v_mul_f32 v{a_+j}, {f2u(-math.log2(math.e))}, v{c_+j}")
    for j in range(4): e(f" v_exp_f32 v{a_+j}, v{a_+j}")
    for j in range(4): e(f" v_add_f32 v{a_+j}, 1.0, v{a_+j}")
    for j in range(4): e(f" v_rcp_f32 v{a_+j}, v{a_+j}")
    for j in range(4): e(f" v_mul_f32 v{c_+j}, v{c_+j}, v{a_+j}")
    for j in range(4): e(f" v_cvt_pk_bf16_f32 v{c_+j}, v{c_+j}, v{c_+j}")
    for j in range(4): e(f" v_and_b32 v{c_+j}, 0xffff0000, v{c_+j}")
    for j in range(4):
        for r in range(4):
            e(f" v_lshlrev_b32 v{t_+2*r}, 16, v{w_+4*j+r}"); e(f" v_and_b32 v{t_+2*r+1}, 0xffff0000, v{w_+4*j+r}")
        for r in range(4):
            sel = f"op_sel:[0,{j&1},0] op_sel_hi:[1,{j&1},1]"
            if j == 0:
                e(f" v_pk_mul_f32 {V(a_+2*r,2)}, {V(t_+2*r,2)}, {V(c_,2)} op_sel_hi:[1,0]")
            else:
                e(f" v_pk_fma_f32 {V(a_+2*r,2)}, {V(t_+2*r,2)}, {V(c_+(j&~1),2)}, {V(a_+2*r,2)} {sel}")
    for sh in (4, 8):
        E.nop(1)
        for i in range(8): e(f" v_add_f32_dpp v{a_+i}, v{a_+i}, v{a_+i} row_ror:{sh} row_mask:0xf bank_mask:0xf")
    for op in ("v_permlane16_swap_b32", "v_permlane32_swap_b32"):
        for i in range(8): e(f" v_mov_b32 v{t_+i}, v{a_+i}")
        E.nop(1)
        for i in range(8): e(f" {op} v{t_+i}, v{a_+i}")
        for i in range(8): e(f" v_add_f32 v{a_+i}, v{a_+i}, v{t_+i}")
    e(f" v_and_b32 v25, 3, v{vLane}")
    e(f" v_lshlrev_b32 v24, 5, v25"); e(f" v_lshl_add_u32 v24, s{sW}, 7, v24"); e(f" v_add_u32 v24, {L_V}, v24")
    e(f" ds_write_b128 v24, {V(a_,4)}"); e(f" ds_write_b128 v24, {V(a_+4,4)} offset:16")
    if nm == "e": stamp(E, "o_gemv")
    for x in midx: e(" " + x)
    e(" s_waitcnt lgkmcnt(0)"); e(" s_barrier")
    if nm == "e": stamp(E, "o_bar")
    e(f" s_cmp_lg_u32 s{sW}, 0"); e(f" s_cbranch_scc1 L_own_done_{nm}")
    e(f" v_and_b32 v24, 31, v{vLane}"); e(f" v_lshlrev_b32 v25, 2, v24"); e(f" v_add_u32 v25, {L_V}, v25")
    for i in range(4): e(f" ds_read_b32 v{t_+i}, v25 offset:{128*i}")
    e(f" s_lshl_b32 s{sT+3}, s{sCb}, 8"); e(f" s_mul_i32 s{sT+4}, s{sKh}, {MOD_HALF}"); e(f" s_add_u32 s{sT+3}, s{sT+3}, s{sT+4}")
    e(f" v_lshlrev_b32 v24, 3, v24")
    e(f" v_cmp_gt_u32 vcc, 32, v{vLane}"); e(" v_mov_b32 v25, 0x40000000")
    e(" s_waitcnt lgkmcnt(0)")
    e(f" v_add_f32 v{t_}, v{t_}, v{t_+1}"); e(f" v_add_f32 v{t_+2}, v{t_+2}, v{t_+3}")
    e(f" v_cndmask_b32 v24, v25, v24, vcc")
    e(f" v_add_f32 v{t_}, v{t_}, v{t_+2}")
    if nm == "e":
        e(" s_waitcnt vmcnt(16)")
        e(f" v_readfirstlane_b32 s{sNonce}, v{vNon}")
        e(" s_nop 0")
        e(f" s_cmp_lg_u32 s{sNonce}, 0"); e(" s_cbranch_scc1 L_nx_o")
        get_nonce(E, "o")
    e(f" v_mov_b32 v{t_+1}, s{sNonce}")
    e(f" buffer_store_dwordx2 {V(t_,2)}, v24, {S(SRD_WS,4)}, s{sT+3} offen offset:{WS_MOD} sc0 sc1")
    stamp(E, "o_pub")
    if Opt.ackstamp:
        e(" s_waitcnt vmcnt(0)")
        stamp(E, "o_ack")
    E.label(f"L_own_done_{nm}")


def mod_loads(E, vaddr, dst, n, soff, parts, pstride):
    for h in range(parts):
        E.raw(f" s_mov_b32 s{sT+2}, {WS_MOD+soff+h*pstride}")
        for i in range(n):
            E.raw(f" buffer_load_dwordx4 {V(dst+(h*n+i)*4,4)}, v{vaddr}, {S(SRD_WS,4)}, s{sT+2} offen offset:{16*i} sc0 sc1")


def mod_check(E, dst, n, tag, t, parts):
    e = E.e
    for i in range(parts * n):
        r = dst + 4 * i
        e(f"v_xor_b32 v{t+1}, {tag}, v{r+1}"); e(f"v_xor_b32 v{t+2}, {tag}, v{r+3}")
        e(f"v_or3_b32 v{t}, v{t}, v{t+1}, v{t+2}" if i else f"v_or_b32 v{t}, v{t+1}, v{t+2}")
    e(f"v_cmp_ne_u32 vcc, 0, v{t}")


def mod_finish(E, dst, n, one, out, parts):
    e = E.e
    for i in range(n):
        a = dst + 4 * i
        for p_ in range(1, parts):
            b = dst + 4 * (p_ * n + i)
            e(f"v_add_f32 v{a}, v{a}, v{b}"); e(f"v_add_f32 v{a+2}, v{a+2}, v{b+2}")
        e(f"v_cvt_pk_bf16_f32 v{a}, v{a}, v{a+2}")
        e(f"v_and_b32 v{a+2}, 0xffff0000, v{a}"); e(f"v_lshlrev_b32 v{a}, 16, v{a}")
        e(f"v_add_f32 v{a}, {one}, v{a}"); e(f"v_add_f32 v{a+2}, {one}, v{a+2}")
        e(f"v_cvt_pk_bf16_f32 v{a}, v{a}, v{a+2}")
        e(f"v_and_b32 v{out+2*i+1}, 0xffff0000, v{a}"); e(f"v_lshlrev_b32 v{out+2*i}, 16, v{a}")


sNonce = 94
vNon = 16


def get_nonce(E, name):
    e = E.raw
    e(f" s_mov_b32 s{sCnt}, 0x100000")
    E.label(f"L_nn_{name}")
    e(" s_waitcnt vmcnt(0)")
    e(f" v_readfirstlane_b32 s{sNonce}, v{vNon}")
    e(f" s_sub_u32 s{sCnt}, s{sCnt}, 1"); e(f" s_cbranch_scc1 L_nx_{name}")
    e(f" s_cmp_lg_u32 s{sNonce}, 0"); e(f" s_cbranch_scc1 L_nx_{name}")
    e(f" buffer_load_dword v{vNon}, off, {S(SRD_D,4)}, 0 sc0 sc1")
    e(f" s_branch L_nn_{name}")
    E.label(f"L_nx_{name}")


def touch_tid(E, t, nw):
    e = E.e
    if nw == 4:
        e(f"v_lshl_add_u32 v{t}, s{sW}, 6, v{vLane}")
    else:
        e(f"s_and_b32 s{sT+2}, s{sW}, 1"); e(f"v_lshl_add_u32 v{t}, s{sT+2}, 6, v{vLane}")


def touch_gate(E, reg, nw):
    if nw != 4:
        E.e(f"s_cmp_ge_u32 s{sW}, 2"); E.e(f"s_cselect_b32 s{reg}, s{reg}, 0x40000000")


def touch_rows(E, sr, t, d, stride, lines_log2, colreg, rowreg, rows, nw=4, row0=0):
    e = E.e
    per = (64 * nw) >> lines_log2
    touch_tid(E, t, nw)
    touch_gate(E, colreg, nw)
    e(f"v_and_b32 v{t+1}, {(1 << lines_log2)-1}, v{t}"); e(f"v_lshrrev_b32 v{t}, {lines_log2}, v{t}")
    if per > rows:
        e(f"v_min_u32 v{t}, {rows-1}, v{t}")
    e(f"s_mul_i32 s{sT+2}, s{rowreg}, {rows}")
    if row0: e(f"s_add_u32 s{sT+2}, s{sT+2}, {row0}")
    e(f"v_add_u32 v{t}, s{sT+2}, v{t}")
    e(f"v_mul_u32_u24 v{t}, {stride}, v{t}")
    e(f"v_lshl_add_u32 v{t}, v{t+1}, 7, v{t}")
    for i in range(max(1, rows // per)):
        e(f"buffer_load_dword v{d}, v{t}, {S(sr,4)}, s{colreg} offen")
        if i + 1 < rows // per:
            e(f"v_add_u32 v{t}, {per*stride}, v{t}")


def touch_lin(E, sr, t, d, nbytes, nw=4):
    e = E.e
    share = nbytes // (32 >> Opt.a)
    touch_tid(E, t, nw)
    e(f"v_lshlrev_b32 v{t}, 7, v{t}")
    e(f"s_mul_i32 s{sT}, s{sCl}, {share}")
    touch_gate(E, sT, nw)
    step = 8192 * nw
    n = (share + step - 1) // step
    for i in range(n):
        left = share - i * step
        if left < step:
            e(f"v_min_u32 v{t}, {left-128}, v{t}")
        e(f"buffer_load_dword v{d}, v{t}, {S(sr,4)}, s{sT} offen")
        if i + 1 < n: e(f"s_add_u32 s{sT}, s{sT}, {step}")


def late_ids(e):
    e(f"s_and_b32 s{sCb}, s2, 7"); e(f"s_lshl_b32 s{sCb}, s{sCb}, 1"); e(f"s_bfe_u32 s{sT+3}, s2, 0x10003")
    e(f"s_or_b32 s{sCb}, s{sCb}, s{sT+3}"); e(f"s_and_b32 s{sT+3}, s2, 0x30"); e(f"s_or_b32 s{sCb}, s{sCb}, s{sT+3}")
    e(f"s_lshl_b32 s{sKh}, s{sCb}, 6"); e(f"s_add_u32 s{sKh}, s{sKh}, 2048")
    e(f"s_lshr_b32 s{sT+3}, s2, 6"); e(f"s_cmp_eq_u32 s{sT+3}, 1"); e(f"s_cselect_b32 s{sKh}, s{sKh}, 0x40000000")


def touches_front(E):
    E.e(f"s_lshl_b32 s{sT+1}, s{sG}, 10")
    touch_rows(E, SRD_WA, 24, 14, 8192, 3, sT + 1, sCl, ((16 << Opt.a) * Opt.wq1) // 16, nw=2)
    if Opt.kvfront:
        touch_lin(E, SRD_K, 24, 14, 49152, nw=2)
        touch_lin(E, SRD_V, 24, 14, 32768, nw=2)
    if Opt.latetouch:
        srd(E, SRD_T, P_WM, 3145728)
        E.e(f"s_mov_b32 s{sT+1}, 2048")
        touch_rows(E, SRD_T, 24, 14, 6144, 5, sT + 1, 2, 2, nw=2)


class Collect:
    def __init__(self): self.out = []
    def e(self, x, tag=None):
        if x.startswith("s_cselect"): self.out[-1] = [self.out[-1], x]
        else: self.out.append(x)
    def nop(self, n): pass


def touches_mid():
    C = Collect()
    if Opt.wq1 < 16:
        C.e(f"s_lshl_b32 s{sT+1}, s{sG}, 10")
        touch_rows(C, SRD_WA, 220, 14, 8192, 3, sT + 1, sCl, ((16 << Opt.a) * (16 - Opt.wq1)) // 16, row0=32 * Opt.wq1)
    a = C.out; C.out = []
    if not Opt.kvfront:
        touch_lin(C, SRD_K, 220, 14, 49152)
        touch_lin(C, SRD_V, 220, 14, 32768)
    return a, C.out


vLc, vLw, vLa, vLt = 56 - 8, 16, 200, 216
LATE_OFF = 16384
vLs = 192


def late_c_loads(E):
    e = E.e
    e(f"v_lshrrev_b32 v24, 2, v{vLane}"); e(f"v_lshl_add_u32 v24, s{sW}, 7, v24"); e(f"v_lshlrev_b32 v24, 1, v24")
    srd(E, SRD_T, P_C, 1024)
    for j in range(8):
        e(f"buffer_load_ushort v{36+j}, v24, {S(SRD_T,4)}, 0 offen offset:{32*j}", tag="latec")


def late_silu(E):
    e = E.e
    c_, a_ = 36, 24
    E.wait(vtag="latec")
    for j in range(8): e(f"v_lshlrev_b32 v{c_+j}, 16, v{c_+j}")
    for j in range(8): e(f"v_mul_f32 v{a_+j}, {f2u(-math.log2(math.e))}, v{c_+j}")
    for j in range(8): e(f"v_exp_f32 v{a_+j}, v{a_+j}")
    for j in range(8): e(f"v_add_f32 v{a_+j}, 1.0, v{a_+j}")
    for j in range(8): e(f"v_rcp_f32 v{a_+j}, v{a_+j}")
    for j in range(8): e(f"v_mul_f32 v{c_+j}, v{c_+j}, v{a_+j}")
    for j in range(8): e(f"v_cvt_pk_bf16_f32 v{c_+j}, v{c_+j}, v{c_+j}")
    for j in range(8): e(f"v_and_b32 v{c_+j}, 0xffff0000, v{c_+j}")
    for j in range(8): e(f"v_accvgpr_write_b32 a{j}, v{c_+j}")


def late_loads(E):
    e = E.e
    e(f"v_lshrrev_b32 v208, 2, v{vLane}"); e(f"v_and_b32 v209, 3, v{vLane}")
    e(f"v_lshl_add_u32 v208, s{sW}, 7, v208")
    e(f"v_mul_u32_u24 v210, 6144, v208"); e(f"v_lshl_add_u32 v210, v209, 4, v210")
    e(f"s_mov_b32 s{sT+3}, s{sKh}")
    srd(E, SRD_T, P_WM, 3145728)
    for j in range(8):
        e(f"buffer_load_dwordx4 {V(vLw+4*j,4)}, v210, {S(SRD_T,4)}, s{sT+3} offen")
        if j < 7: e(f"s_add_u32 s{sT+3}, s{sT+3}, {16*6144}")


def late_gemv(e):
    c_, w_, a_, t_ = vLs, vLw, vLa, vLt
    for j in range(8): e(f"v_accvgpr_read_b32 v{c_+j}, a{j}")
    for j in range(8): e(f"v_accvgpr_write_b32 a{j}, 0")
    for j in range(8):
        for r in range(4):
            e(f"v_lshlrev_b32 v{t_}, 16, v{w_+4*j+r}"); e(f"v_and_b32 v{t_+1}, 0xffff0000, v{w_+4*j+r}")
            op = "v_mul_f32" if j == 0 else "v_fmac_f32"
            e(f"{op} v{a_+2*r}, v{t_}, v{c_+j}"); e(f"{op} v{a_+2*r+1}, v{t_+1}, v{c_+j}")
    for sh in (4, 8):
        for i in range(8): e(f"v_add_f32_dpp v{a_+i}, v{a_+i}, v{a_+i} row_ror:{sh} row_mask:0xf bank_mask:0xf")
    for op in ("v_permlane16_swap_b32", "v_permlane32_swap_b32"):
        for i in range(8): e(f"v_mov_b32 v{t_+i}, v{a_+i}")
        for i in range(8): e(f"{op} v{t_+i}, v{a_+i}")
        for i in range(8): e(f"v_add_f32 v{a_+i}, v{a_+i}, v{t_+i}")
    e(f"v_and_b32 v{t_}, 3, v{vLane}"); e(f"v_lshl_add_u32 v{t_}, v{t_}, 5, s{sSlA}")
    e("v_mov_b32 v214, 0x40000000")


def late_publish(E):
    e = E.raw
    t_ = 24
    e(f" s_lshr_b32 s{sT+3}, s2, 6"); e(f" s_lshl_b32 s{sT+3}, s{sT+3}, 2"); e(f" s_or_b32 s{sT+3}, s{sT+3}, s{sW}")
    e(f" s_cmp_lg_u32 s{sT+3}, 7"); e(f" s_cbranch_scc1 L_late_done")
    e(f" v_and_b32 v22, 15, v{vLane}"); e(f" v_lshlrev_b32 v22, 3, v22"); e(f" v_add_u32 v23, {L_X}, v22")
    for i in range(4): e(f" ds_read_b64 {V(t_+2*i,2)}, v23 offset:{8192*i}")
    e(f" s_lshr_b32 s{sT+3}, s{sCb}, 4"); e(f" s_cmp_eq_u32 s{sT+3}, 2"); e(f" s_cselect_b32 s{sT+4}, 1.0, 0")
    e(f" s_lshl_b32 s{sT+3}, s{sCb}, 7"); e(f" s_add_u32 s{sT+3}, s{sT+3}, {WS_MOD+LATE_OFF}")
    e(f" v_add_u32 v22, s{sT+3}, v22")
    e(f" v_cmp_gt_u32 vcc, 16, v{vLane}")
    e(" s_waitcnt lgkmcnt(0)")
    e(f" v_pk_add_f32 {V(t_,2)}, {V(t_,2)}, {V(t_+2,2)}"); e(f" v_pk_add_f32 {V(t_+4,2)}, {V(t_+4,2)}, {V(t_+6,2)}")
    e(f" v_cndmask_b32 v214, v214, v22, vcc")
    e(f" v_pk_add_f32 {V(t_,2)}, {V(t_,2)}, {V(t_+4,2)}")
    e(f" v_cvt_pk_bf16_f32 v{t_+2}, v{t_}, v{t_+1}")
    e(f" v_lshlrev_b32 v{t_}, 16, v{t_+2}"); e(f" v_and_b32 v{t_+1}, 0xffff0000, v{t_+2}")
    e(f" v_add_f32 v{t_}, s{sT+4}, v{t_}"); e(f" v_add_f32 v{t_+1}, s{sT+4}, v{t_+1}")
    e(f" v_cvt_pk_bf16_f32 v238, v{t_}, v{t_+1}"); e(f" v_mov_b32 v239, s{sNonce}")
    E.label("L_late_done")


def touches_tail(E, which):
    t, d = 222, 14
    if which == "wo":
        touch_lin(E, SRD_WB, t, d, 524288)
    else:
        srd(E, SRD_T, P_W1, 1835008)
        E.e(f"s_mul_i32 s{sT+1}, s{sG}, 448"); E.e(f"s_and_b32 s{sT+1}, s{sT+1}, {hex(0xffffff80)}")
        touch_rows(E, SRD_T, t, d, 3584, 2, sT + 1, sCl, 16 << Opt.a)
        touch_lin(E, SRD_WC, t, d, 229376)


def main_kernel():
    E = Emit(); e = E.e
    e("s_cmp_ge_u32 s2, 256"); e("s_cbranch_scc1 L_end")
    load_ptrs(E)
    a = Opt.a
    e(f"s_bfe_u32 s{sG}, s2, {hex(((3-a) << 16) | a)}"); e(f"s_lshl_b32 s{sG}, s{sG}, {a}")
    e(f"s_bfe_u32 s{sT}, s2, {hex((a << 16) | 3)}"); e(f"s_add_u32 s{sG}, s{sG}, s{sT}")
    e(f"s_lshr_b32 s{sCl}, s2, {3+a}")
    e(f"s_and_b32 s{sC}, s2, {(1 << a)-1}"); e(f"s_lshl_b32 s{sC}, s{sC}, {5-a}"); e(f"s_add_u32 s{sC}, s{sC}, s{sCl}")
    e(f"v_mov_b32 v{vTid}, v0")
    e(f"s_lshl_b32 s{sKVb}, s{sW}, 12")
    e(f"s_lshl_b32 s{sSlA}, s{sW}, 13"); e(f"s_add_u32 s{sSlA}, s{sSlA}, {L_X}")
    e(f"s_lshl_b32 s{sSlB}, s{sW}, 14")
    e(f"s_lshl_b32 s{sT}, s{sC}, 16"); e(f"s_lshl_b32 s{sT+1}, s{sW}, 14"); e(f"s_add_u32 s{sT}, s{sT}, s{sT+1}")
    e(f"v_lshrrev_b32 v18, 4, v{vLane}"); e(f"v_and_b32 v19, 15, v{vLane}")
    e(f"v_lshlrev_b32 v20, 10, v18"); e(f"v_lshl_add_u32 v20, v19, 4, v20")
    e(f"v_lshlrev_b32 v21, 5, v19")
    for j in range(4):
        e(f"s_add_u32 s{sJr+j}, s{sC}, {j}"); e(f"s_and_b32 s{sJr+j}, s{sJr+j}, 3"); e(f"s_lshl_b32 s{sJr+j}, s{sJr+j}, 2")
    e("s_memrealtime s[90:91]")
    e("s_waitcnt lgkmcnt(0)")
    srd(E, SRD_D, P_DBG, 256)
    e(f"s_or_b32 s{sT+1}, s2, s{sW}"); e("s_cbranch_scc1 L_nonce_set")
    e("s_or_b32 s90, s90, 1"); e("v_mov_b32 v23, s90")
    E.raw(f" buffer_store_dword v23, off, {S(SRD_D,4)}, 0 sc0 sc1")
    E.label("L_nonce_set")
    stamp(E, "start")
    srd(E, SRD_X, P_X, 2097152)
    e("s_getpc_b64 s[46:47]")
    e(f"s_lshr_b32 s{sT+1}, s2, 3"); e(f"s_lshl_b32 s{sT+1}, s{sT+1}, 2"); e(f"s_add_u32 s{sT+1}, s{sT+1}, s{sW}")
    e(f"v_and_b32 v22, 3, v{vLane}"); e(f"v_lshl_add_u32 v22, s{sT+1}, 2, v22"); e("v_lshlrev_b32 v22, 7, v22")
    e(f"global_load_dword v14, v22, s[46:47]")
    srd(E, SRD_WS, P_WS, WS_BYTES)
    if Opt.wstlb:
        e(f"s_cmp_eq_u32 s{sW}, {Opt.wstlb}"); e(f"s_cselect_b32 s{sT+1}, {WS_MOD+32768}, 0x40000000")
        e(f"buffer_load_dword v14, off, {S(SRD_WS,4)}, s{sT+1}")
    e(f"s_cmp_ge_u32 s2, 64"); e("s_cbranch_scc1 L_noown1")
    owner_loads(E, 128)
    E.raw(" s_waitcnt vmcnt(8)")
    E.raw(f" buffer_load_dword v{vNon}, off, {S(SRD_D,4)}, 0 sc0 sc1")
    E.label("L_noown1")
    stamp(E, "x1")

    def xloads(js):
        for j in js:
            for i in range(4):
                if i == 0:
                    e(f"s_lshl_b32 s{sT+1}, s{sJr+j}, 10"); e(f"s_add_u32 s{sT+1}, s{sT+1}, s{sT}")
                e(f"buffer_load_dwordx4 {V(64+(j*4+i)*4,4)}, v20, {S(SRD_X,4)}, s{sT+1} offen offset:{256*i}", tag=("x", j))
    xloads((0, 1))
    stamp(E, "x_iss")
    e(f"s_cmp_lt_u32 s2, 64"); e("s_cbranch_scc1 L_own")
    n0 = len(E.L); xloads((2, 3)); midx = E.L[n0:]
    e("s_branch L_own_done_e")
    E.label("L_own")
    E.raw(" s_waitcnt vmcnt(9)")
    owner_gemv(E, "e", 128, 160, midx)
    stamp(E, "owner")
    srd(E, SRD_WA, P_WQ, 4194304)
    e(f"s_lshl_b32 s{sT}, s{sG}, 19")
    srd(E, SRD_K, P_K, 524288, add=sT)
    srd(E, SRD_V, P_V, 524288, add=sT)
    srd(E, SRD_WB, P_WO, 524288, add=sT)
    e(f"s_mul_i32 s{sT}, s{sG}, 229376")
    srd(E, SRD_WC, P_W2, 229376, add=sT)
    e(f"s_lshl_b32 s{sT+2}, s{sG}, 2"); e(f"s_add_u32 s{sT+2}, s{sT+2}, s{sW}"); e(f"s_lshl_b32 s{sT+2}, s{sT+2}, 8")
    addr_wdma128(e, vWq, 8192, False, sT + 2, 24)
    UQ = Units([("wq", i) for i in range(16)])
    late_ids(e)
    stamp(E, "issue")
    for jj in range(2):
        js = (2 * jj, 2 * jj + 1)
        if True:
            E.wait(vm=E.vm_n(("x", js[1])) + 1)
            e(f"s_lshr_b32 s{sT+3}, s2, 6"); e(f"s_or_b32 s{sT+3}, s{sT+3}, s{sW}"); e(f"s_cbranch_scc0 L_xw{jj}")
        E.wait(vtag=("x", js[1]))
        E.label(f"L_xw{jj}")
        stamp(E, f"xw{jj}")
        U_ = lambda n: 128 + js[n] * 32
        for n, j in enumerate(js):
            for r in range(16):
                e(f"v_lshlrev_b32 v{U_(n)+2*r}, 16, v{64+j*16+r}")
                e(f"v_and_b32 v{U_(n)+2*r+1}, 0xffff0000, v{64+j*16+r}")
        if jj == 1:
            late_c_loads(E)
            touches_front(E)
        for n in range(2):
            u = U_(n); a = 24 + n * 4
            e(f"v_pk_add_f32 {V(a,2)}, {V(u,2)}, {V(u+2,2)}")
            e(f"v_pk_add_f32 {V(a+2,2)}, {V(u+4,2)}, {V(u+6,2)}")
        for r in range(4, 16):
            for n in range(2):
                u = U_(n); a = 24 + n * 4 + (r & 1) * 2
                e(f"v_pk_add_f32 {V(a,2)}, {V(a,2)}, {V(u+2*r,2)}")

        def rowred():
            for n in range(2):
                a = 24 + n * 4
                e(f"v_pk_add_f32 {V(a,2)}, {V(a,2)}, {V(a+2,2)}")
            for n in range(2):
                a = 24 + n * 4
                e(f"v_add_f32 v{a}, v{a}, v{a+1}")
            for sh in (8, 4, 2, 1):
                E.nop(1)
                for n in range(2):
                    a = 24 + n * 4
                    e(f"v_add_f32_dpp v{a}, v{a}, v{a} row_ror:{sh} row_mask:0xf bank_mask:0xf")
        rowred()
        for n in range(2):
            a = 24 + n * 4
            e(f"v_mul_f32 v{a}, {f2u(-1.0/512)}, v{a}")
        for r in range(16):
            for n in range(2):
                u = U_(n); a = 24 + n * 4
                e(f"v_pk_add_f32 {V(u+2*r,2)}, {V(u+2*r,2)}, {V(a,2)} op_sel_hi:[1,0]")
        for r in range(16):
            for n in range(2):
                u = U_(n); a = 24 + n * 4 + (r & 1) * 2
                if r < 2:
                    e(f"v_pk_mul_f32 {V(a,2)}, {V(u+2*r,2)}, {V(u+2*r,2)}")
                else:
                    e(f"v_pk_fma_f32 {V(a,2)}, {V(u+2*r,2)}, {V(u+2*r,2)}, {V(a,2)}")
        if jj == 1:
            e(f"v_lshlrev_b32 v22, 6, v{vTid}")
            e(f"s_cmp_ge_u32 s{sW}, 2"); e("s_cbranch_scc1 L_nospec")
            E.raw(f" buffer_load_dword v{vNon}, off, {S(SRD_D,4)}, 0 sc0 sc1")
            if Opt.spec: mod_loads(E, 22, 64, 4, 0, 2, MOD_HALF)
            E.label("L_nospec")
        rowred()
        e(f"v_mov_b32 v23, {f2u(1e-5)}")
        for n in range(2):
            a = 24 + n * 4
            e(f"v_fmac_f32 v23, {f2u(1.0/512)}, v{a}")
            e(f"v_rsq_f32 v{a}, v23")
            if n == 0: e(f"v_mov_b32 v23, {f2u(1e-5)}")
        E.nop(1)
        for n in range(2):
            u = U_(n); a = 24 + n * 4
            for r in range(16):
                e(f"v_pk_mul_f32 {V(u+2*r,2)}, {V(u+2*r,2)}, {V(a,2)} op_sel_hi:[1,0]")
    late_silu(E)
    addr_bimg(e, vBa, 10, L_V, 24)
    addr_tr128(e, 24)
    e(f"s_lshl_b32 s{sT}, s{sW}, 14"); e(f"s_add_u32 s{sT}, s{sT}, {L_V}")
    for j in range(4):
        e(f"v_add_u32 v24, s{sJr+j}, v18"); e(f"v_xor_b32 v25, v24, v19")
        e(f"v_lshlrev_b32 v24, 10, v24"); e(f"v_lshl_add_u32 v24, v25, 4, v24")
        e(f"v_add_u32 v{vHw+j}, s{sT}, v24")
    for i in range(8, 128): e(f"v_accvgpr_write_b32 a{aO+i}, 0")
    stamp(E, "stats")
    MODL = L_V
    e(f"s_cmp_ge_u32 s{sW}, 2"); e("s_cbranch_scc1 L_twave")
    get_nonce(E, "p")
    e(f"s_mov_b32 s{sCnt}, 0x100000")
    if Opt.spec: e("s_branch L_pm1")
    for _ in range(Opt.pm_sleep): e("s_sleep 8")
    E.label("L_pm")
    mod_loads(E, 22, 64, 4, 0, 2, MOD_HALF)
    E.label("L_pm1")
    e(f"s_sub_u32 s{sCnt}, s{sCnt}, 1"); e("s_cbranch_scc1 L_pmx")
    E.raw(" s_waitcnt vmcnt(0)")
    mod_check(E, 64, 4, f"v{vNon}", 24, 2)
    e("s_cbranch_vccnz L_pm")
    E.label("L_pmx")
    stamp(E, "p_ok")
    if Opt.stamps: e(f"v_writelane_b32 v{vStC}, s{sCnt}, 63")
    e(f"s_cmp_eq_u32 s{sW}, 1"); e(f"s_cselect_b32 s{sT+1}, 1.0, 0")
    mod_finish(E, 64, 4, f"s{sT+1}", 24, 2)
    e(f"s_mov_b32 s{sT}, {f2u(CS)}")
    for i in range(8): e(f"v_mul_f32 v{24+i}, s{sT}, v{24+i}")
    e("v_lshrrev_b32 v22, 1, v22"); e(f"v_add_u32 v22, {MODL}, v22")
    E.raw(f" ds_write_b128 v22, v[24:27]"); E.raw(f" ds_write_b128 v22, v[28:31] offset:16")
    E.raw(f" v_mov_b32 v22, {MODL}"); E.raw(f" ds_write_b32 v22, v{vNon} offset:4096")
    E.raw(" s_waitcnt lgkmcnt(0)")
    E.label("L_twave")
    e("s_barrier")
    stamp(E, "modpoll")
    e(f"v_mov_b32 v22, {MODL}"); e(f"ds_read_b32 v{vNon}, v22 offset:4096"); e(f"v_add_u32 v21, {MODL}, v21")
    for i in range(4):
        for a_ in range(2):
            for h in range(2):
                e(f"ds_read_b128 {V(64+a_*32+i*8+h*4,4)}, v21 offset:{a_*2048+i*512+h*16}", tag=("mod", i))
    emit_items(E, UQ.items())
    E.wait(lg=0); e("s_barrier")
    e(f"v_readfirstlane_b32 s{sNonce}, v{vNon}")
    n = 0
    side = [lambda it=it: emit_items(E, [it]) for it in UQ.items() + UQ.items()]
    for i in range(4):
        for j in range(4):
            o = 36 + (n % 3) * 4; n += 1
            for r in range(4):
                u = 128 + j * 32 + i * 8 + 2 * r
                e(f"v_pk_fma_f32 {V(u,2)}, {V(u,2)}, {V(96+i*8+2*r,2)}, {V(64+i*8+2*r,2)}")
            for k_ in range(2 if n in (1, 9) else 1):
                if side: emit1(E, side.pop(0))
            for r in range(4):
                u = 128 + j * 32 + i * 8 + 2 * r
                e(f"v_cvt_pk_bf16_f32 v{o+r}, v{u}, v{u+1}")
            e(f"ds_write_b128 v{vHw+j}, {V(o,4)} offset:{256*i}")
    assert not side
    unit_load(E, UQ, "wq", range(Opt.la_q), refill=False)
    E.wait(lg=0); e("s_barrier")
    pq = []
    for _ in range(Opt.la_q): pq += UQ.items()
    stamp(E, "ln1")
    dump_lds(E, L_V, 65536, 0)
    C = Collect(); late_loads(C)
    extra = C.out[:-1] + [(C.out[-1], "late")]
    addr_kv(extra.append, 216)
    addr_blk(extra.append, vBl, 13, 216)
    extra.append(f"s_lshl_b32 s{sT}, s{sW}, 8")
    addr_wdma128(extra.append, vWo, 1024, True, sT, 216)
    extra += [f"v_mov_b32 v{vOnes+i}, 0x3f803f80" for i in range(4)]
    addr_wo64(extra.append, 216)
    extra.append(lambda: E.wait(vtag="late"))
    late_gemv(extra.append)
    gemm(E, UQ, "wq", 16, "xor", extra, slots=(16, 17, 18, 19, 21, 23, 25, 27, 28, 29, 31), pend0=pq)
    e(f"ds_write_b128 v{vLt}, {V(vLa,4)}"); e(f"ds_write_b128 v{vLt}, {V(vLa+4,4)} offset:16")
    E.wait(lg=0)
    e("s_barrier")
    late_publish(E)
    stamp(E, "qproj")
    UT = Units([("wo", i) for i in range(16)] + [("w1", i) for i in range(8)] + [("w2", i) for i in range(7)])
    if Opt.touch == "attn": touch_partials(E.e)
    sites = attention(E, UT)
    stamp(E, "attn_epi")
    dump_lds(E, L_V, 65536, 32 << 20)
    srd(E, SRD_WA, P_W1, 1835008)
    if Opt.touch == "wo0": touch_partials(E.e)
    extra = []
    addr_w1(extra.append, 216)
    addr_xchg(extra.append, 216)
    t = 240
    vXo, vOw, vSt, vXr, vMd = 14, 206, 207, 224, 192
    x_ = extra.append
    x_(f"v_lshrrev_b32 v{t}, 5, v{vLane}"); x_(f"v_bfe_u32 v{t+1}, v{vLane}, 3, 2")
    x_(f"v_lshl_add_u32 v{t}, v{t}, 3, v{t+1}"); x_(f"v_lshlrev_b32 v{t}, 4, v{t}")
    x_(f"v_lshl_add_u32 v{t}, s{sW}, 9, v{t}")
    x_(f"v_lshrrev_b32 v{t+1}, 1, v{t}"); x_(f"v_and_b32 v{t+2}, 7, v{vLane}")
    x_(f"s_lshl_b32 s{sT+5}, s{sC}, 3"); x_(f"s_add_u32 s{sT+5}, s{sT+5}, s{sG}"); x_(f"s_lshl_b32 s{sT+5}, s{sT+5}, 13")
    x_(f"v_lshl_add_u32 v{vXo}, v{t+2}, 10, v{t+1}")
    x_(f"v_mul_u32_u24 v{vOw}, 1056, v{t+2}"); x_(f"v_add_u32 v{vOw}, v{vOw}, v{t+1}")
    x_(f"v_lshlrev_b32 v{vSt}, 5, v{t+2}"); x_(f"v_add_u32 v{vSt}, {L_V}, v{vSt}")
    x_(f"v_lshlrev_b32 v{t+1}, 5, v{vLane}"); x_(f"v_lshl_add_u32 v{t+1}, s{sW}, 11, v{t+1}")
    x_(f"s_mov_b32 s{sT+6}, {WS_MOD+LATE_OFF}")
    lt = []; x_ = lt.append
    for i in range(2):
        x_((f"buffer_load_dwordx4 {V(vMd+4*i,4)}, v{t+1}, {S(SRD_WS,4)}, s{sT+6} offen offset:{16*i} sc0 sc1", "md"))
    for q in range(4):
        x_((f"buffer_load_dwordx2 {V(vXr+2*q,2)}, v{vXo}, {S(SRD_X,4)}, s{sT+5} offen offset:{(q>>1)*128+(q&1)*32}", "xr"))
    if Opt.wo2:
        partial_bases(extra.append, WS_P1)
        wo_two_pass(E, UT, extra, lt, UT.items())
    else:
        gemm(E, UT, "wo", 16, "blk", extra, late=lt, pend0=UT.items())
    stamp(E, "wo")
    E.wait(vtag="xr")
    if Opt.wo2:
        E.nop(4)
        for n, (np_, rt) in enumerate([(np_, rt) for np_ in (2, 3) for rt in range(4)]):
            for x in piece_out(np_, rt, 216 + (n % 2) * 4 if n % 4 < 2 else 232 + (n % 2) * 4): emit1(E, x)
    for i in range(8):
        e(f"v_lshlrev_b32 v{16+2*i}, 16, v{vXr+i}"); e(f"v_and_b32 v{17+2*i}, 0xffff0000, v{vXr+i}")
    if not Opt.wo2:
        publish_partial(E, WS_P1)
    stamp(E, "st_iss")
    unit_load(E, UT, "w1", (0, 1, 2))
    stamp(E, "w1a")
    e(f"s_mov_b32 s{sCnt}, 0x100000")
    E.label("L_lm")
    mod_check(E, vMd, 2, f"s{sNonce}", 216, 1)
    e("s_cbranch_vccz L_lmx")
    e(f"s_sub_u32 s{sCnt}, s{sCnt}, 1"); e("s_cbranch_scc1 L_lmx")
    mod_loads(E, t + 1, vMd, 2, LATE_OFF, 1, 0)
    E.raw(" s_waitcnt vmcnt(0)")
    e("s_branch L_lm")
    E.label("L_lmx")
    for i in range(4):
        e(f"v_lshlrev_b32 v{216+2*i}, 16, v{vMd+2*i}"); e(f"v_and_b32 v{217+2*i}, 0xffff0000, v{vMd+2*i}")
    e(f"v_add_u32 v{t+1}, {L_V+4096}, v{t+1}"); e(f"v_add_u32 v{t}, {L_V+4096}, v{t}")
    signal(E, 0, "pst")
    e(f"ds_write_b128 v{t+1}, v[216:219]"); e(f"ds_write_b128 v{t+1}, v[220:223] offset:16")
    E.wait(lg=0); e("s_barrier")
    for (dst, arr) in ((128, 0), (144, 2), (160, 1), (32, 3)):
        for q in range(4):
            e(f"ds_read_b128 {V(dst+4*q,4)}, v{t} offset:{arr*2048+(q>>1)*256+(q&1)*64}")
    stamp(E, "pub1")
    R = Emit(); R.vtag = dict(E.vtag); R.vm = E.vm
    nxt = UT.next
    unit_load(R, UT, "w1", (3, 4, 5)); UT.next = nxt
    poll(E, 0, 3, R.L if Opt.rot else None)
    stamp(E, "poll1")
    load_partials(E, WS_P1)
    if Opt.rot: e(f"s_cmp_lg_u32 s{sW}, 3"); e("s_cbranch_scc1 L_w3a")
    unit_load(E, UT, "w1", (3, 4, 5), refill=False)
    E.label("L_w3a")
    sum_partials(E, 184)
    E.wait(lg=0)
    stamp(E, "psum1")
    n0 = len(E.L)
    for i in range(8):
        e(f"v_pk_fma_f32 {V(16+2*i,2)}, {V(184+2*i,2)}, {V(128+2*i,2)}, {V(16+2*i,2)}")
    a = 216
    e(f"v_pk_add_f32 {V(a,2)}, {V(16,2)}, {V(18,2)}")
    for i in range(2, 8): e(f"v_pk_add_f32 {V(a,2)}, {V(a,2)}, {V(16+2*i,2)}")
    e(f"v_add_f32 v{a}, v{a}, v{a+1}")
    allred8(E, a, a + 1)
    e(f"v_mul_f32 v{a}, {f2u(1.0/128)}, v{a}")
    for i in range(8): e(f"v_pk_add_f32 {V(64+2*i,2)}, {V(16+2*i,2)}, {V(a,2)} op_sel_hi:[1,0] neg_lo:[0,1] neg_hi:[0,1]")
    e(f"v_pk_mul_f32 {V(a+2,2)}, {V(64,2)}, {V(64,2)}")
    for i in range(1, 8): e(f"v_pk_fma_f32 {V(a+2,2)}, {V(64+2*i,2)}, {V(64+2*i,2)}, {V(a+2,2)}")
    e(f"v_add_f32 v{a+1}, v{a+2}, v{a+3}")
    allred8(E, a + 1, a + 2)
    e(f"v_lshl_add_u32 v{a+2}, s{sW}, 3, v{vSt}")
    e(f"ds_write_b64 v{a+2}, {V(a,2)}")
    E.wait(lg=0); e("s_barrier")
    e(f"ds_read_b128 {V(a+4,4)}, v{vSt}"); e(f"ds_read_b128 {V(a+8,4)}, v{vSt} offset:16")
    E.wait(lg=0)
    m_, q_ = a + 2, a + 3
    e(f"v_pk_add_f32 {V(m_,2)}, {V(a+4,2)}, {V(a+6,2)}"); e(f"v_pk_add_f32 {V(a+12,2)}, {V(a+8,2)}, {V(a+10,2)}")
    e(f"v_pk_add_f32 {V(m_,2)}, {V(m_,2)}, {V(a+12,2)}")
    e(f"v_mul_f32 v{m_}, 0x3e800000, v{m_}")
    for w_ in range(4):
        e(f"v_sub_f32 v{a+4+2*w_}, v{a+4+2*w_}, v{m_}")
    e(f"v_mul_f32 v{a+12}, v{a+4}, v{a+4}")
    for w_ in range(1, 4):
        e(f"v_fmac_f32 v{a+12}, v{a+4+2*w_}, v{a+4+2*w_}")
    e(f"v_fmac_f32 v{q_}, {f2u(128.0)}, v{a+12}")
    e(f"v_mov_b32 v{a+1}, {f2u(1e-5)}"); e(f"v_fmac_f32 v{a+1}, {f2u(1.0/512)}, v{q_}"); e(f"v_rsq_f32 v{a+1}, v{a+1}")
    e(f"v_sub_f32 v{a}, v{a}, v{m_}")
    for i in range(8):
        e(f"v_pk_add_f32 {V(64+2*i,2)}, {V(64+2*i,2)}, {V(a,2)} op_sel_hi:[1,0]")
        e(f"v_pk_mul_f32 {V(64+2*i,2)}, {V(64+2*i,2)}, {V(a,2)} op_sel:[0,1] op_sel_hi:[1,1]")
        e(f"v_pk_fma_f32 {V(64+2*i,2)}, {V(64+2*i,2)}, {V(144+2*i,2)}, {V(160+2*i,2)}")
        e(f"v_cvt_pk_bf16_f32 v{80+i}, v{64+2*i}, v{65+2*i}")
    if Opt.ln2dma:
        ln = E.L[n0:]; del E.L[n0:]
        its = UT.items() + UT.items() + UT.items()
        step = max(1, len(ln) // (len(its) + 1))
        for i, x in enumerate(ln):
            E.raw(x)
            if i % step == step - 1 and its: emit_items(E, [its.pop(0)])
        emit_items(E, its)
    e(f"s_mul_i32 s{sT}, s{sC}, {Opt.pad}"); e(f"s_add_u32 s{sT}, s{sT}, s{sT+5}"); e(f"s_add_u32 s{sT}, s{sT}, {WS_H2}")
    for pc in range(2):
        e(f"buffer_store_dwordx4 {V(80+4*pc,4)}, v{vPld}, {S(SRD_WS,4)}, s{sT} offen offset:{pc*1024}{Opt.stsc}", tag="h2st")
    stamp(E, "ln2")
    signal(E, 1, "h2st")
    if Opt.rot: e(f"s_cmp_lg_u32 s{sW}, 3"); e("s_cbranch_scc1 L_w3b")
    for _ in range(3): emit_items(E, UT.items())
    E.label("L_w3b")
    e(f"s_mul_i32 s{sT}, s{sC}, {65536+Opt.pad}"); e(f"s_lshl_b32 s{sT+1}, s{sW}, 14"); e(f"s_add_u32 s{sT}, s{sT}, s{sT+1}")
    e(f"s_add_u32 s{sT}, s{sT}, {WS_H2}"); e(f"s_add_u32 s{sT+1}, s{sT+1}, {L_V}")
    e(f"v_lshlrev_b32 v64, 4, v{vLane}")
    poll(E, 1, 0)
    stamp(E, "poll2")
    for r in range(16):
        if r % 4 == 0:
            e(f"s_add_u32 m0, s{sT+1}, {r*1024}"); e(f"s_add_u32 s{sT+2}, s{sT}, {r*1024}")
        e(f"buffer_load_dwordx4 v64, {S(SRD_WS,4)}, s{sT+2} offen offset:{(r&3)*1024}{Opt.ldsc} lds", tag="h2ld")
    unit_load(E, UT, "w1", (6, 7), refill=False)
    E.wait(vm=0, lg=0); e("s_barrier")
    stamp(E, "h2ld")
    dump_regs(E, 16, 16, 48 << 20)
    gemm(E, UT, "w1", 16, "blk", pend0=UT.items() + UT.items())
    for np_ in range(2):
        for rt in range(4):
            o = 160 + (np_ * 4 + rt) * 4
            for h in range(2):
                a = vAcc + ((2 * np_ + h) * 4 + rt) * 4
                e(f"v_cvt_pk_bf16_f32 v{o+2*h}, v{a}, v{a+1}")
                e(f"v_cvt_pk_bf16_f32 v{o+2*h+1}, v{a+2}, v{a+3}")
            for i in range(4):
                e(f"v_pk_max_i16 v{o+i}, v{o+i}, 0")
    e("s_barrier")
    for np_ in range(2):
        for rt in range(4):
            e(f"ds_write_b128 v{vFw}, {V(160+(np_*4+rt)*4,4)} offset:{rt*8192+np_*512}")
    E.wait(lg=0)
    e("s_barrier")
    stamp(E, "ffn1")
    dump_lds(E, L_V, 32768, 52 << 20)
    if Opt.ffn2n:
        ffn2(E, Opt.p2)
        stamp(E, "ffn2")
    else:
        gemm(E, UT, "w2", 7, "f")
        stamp(E, "ffn2")
        E.nop(8)
        publish_partial(E, Opt.p2)
    srd(E, SRD_X, P_OUT, 2097152)
    signal(E, 2, "pst")
    stamp(E, "pub2")
    poll(E, 2, 3)
    stamp(E, "poll3")
    load_partials(E, Opt.p2)
    sum_partials(E, 184)
    for i in range(8):
        e(f"v_pk_fma_f32 {V(16+2*i,2)}, {V(184+2*i,2)}, {V(32+2*i,2)}, {V(16+2*i,2)}")
        e(f"v_cvt_pk_bf16_f32 v{64+i}, v{16+2*i}, v{17+2*i}")
    for q in range(4):
        e(f"ds_write_b64 v{vOw}, {V(64+2*q,2)} offset:{(q>>1)*128+(q&1)*32}")
    e(f"s_mul_i32 s{sT}, s{sW}, 2112"); e(f"v_lshl_add_u32 v72, v{vLane}, 4, s{sT}")
    E.wait(lg=0); e("s_barrier")
    e(f"ds_read_b128 v[76:79], v72"); e(f"ds_read_b128 v[80:83], v72 offset:1056")
    E.wait(lg=1)
    e(f"buffer_store_dwordx4 v[76:79], v{vPld}, {S(SRD_X,4)}, s{sT+5} offen")
    E.wait(lg=0)
    e(f"buffer_store_dwordx4 v[80:83], v{vPld}, {S(SRD_X,4)}, s{sT+5} offen offset:1024")
    if Opt.stamps:
        E.wait(vm=0)
        stamp(E, "end")
        e(f"s_lshl_b32 s{sT}, s2, 2"); e(f"s_add_u32 s{sT}, s{sT}, s{sW}"); e(f"s_lshl_b32 s{sT}, s{sT}, 9")
        e(f"s_add_u32 s{sT}, s{sT}, {WS_STAMP}")
        e(f"v_lshlrev_b32 v254, 2, v{vLane}")
        e(f"buffer_store_dword v{vStC}, v254, {S(SRD_WS,4)}, s{sT} offen")
        e(f"buffer_store_dword v{vStR}, v254, {S(SRD_WS,4)}, s{sT} offen offset:256")
        if Opt.only:
            e(f"s_cmp_eq_u32 s2, {Opt.dbgwg}"); e(f"s_cselect_b32 s{sT}, 4, 0x40000000"); e(f"s_cmp_eq_u32 s{sW}, 0"); e(f"s_cselect_b32 s{sT}, s{sT}, 0x40000000")
            e(f"v_readlane_b32 s90, v{vStR}, 0"); e(f"v_readlane_b32 s91, v{vStC}, 0"); E.nop(2)
            e(f"v_subrev_u32 v{vStR}, s90, v{vStR}"); e(f"v_subrev_u32 v{vStC}, s91, v{vStC}")
            e(f"v_cmp_gt_u32 vcc, 8, v{vLane}"); e("v_mov_b32 v253, 0x40000000"); E.nop(1); e("v_cndmask_b32 v254, v253, v254, vcc")
            e(f"buffer_store_dword v{vStR}, v254, {S(SRD_D,4)}, s{sT} offen")
            e(f"buffer_store_dword v{vStC}, v254, {S(SRD_D,4)}, s{sT} offen offset:28")
    E.label("L_end")
    e("s_endpgm")
    for lab, t_ in sites:
        E.label(f"L_tr_{lab}")
        e(f"s_call_b64 {S(sRet,2)}, L_rare_{t_&3}")
        e(f"s_branch L_back_{lab}")
    for k in range(4):
        rare(E, k)
    return E


HEAD = open("cdna_kernels/" + NAME + ".s.ref").read().split("; Override launch geometry")[0]


def kd(name, nv, acc, ns=102):
    return f""".amdhsa_kernel {name}
  .amdhsa_next_free_vgpr {nv}
  .amdhsa_next_free_sgpr {ns}
  .amdhsa_accum_offset {acc}
  .amdhsa_group_segment_fixed_size 0
  .amdhsa_kernarg_size 104
  .amdhsa_user_sgpr_count 2
  .amdhsa_user_sgpr_kernarg_segment_ptr 1
  .amdhsa_system_sgpr_workgroup_id_x 1
.end_amdhsa_kernel
"""


def build(path, dump=False, stamps=False, **kw):
    Opt.dump, Opt.stamps = dump, stamps
    Opt.stamp_names = []; _stamp_n[0] = 0
    Opt.code_pf = 2; Opt.a = 1; Opt.tt2 = 58; Opt.p2 = WS_P2; Opt.touch = None; Opt.tf = True; Opt.tt = True; Opt.wq_l2 = False; Opt.late_wq = 2; Opt.own_w = 0; Opt.tf_at = 1; Opt.la_q = 1; Opt.poll1w = True; Opt.wo2 = True; Opt.wost = (11, 12); Opt.ffn2n = True; Opt.rot = True; Opt.atsc = ' sc1'; Opt.ln2dma = False; Opt.pollw = 3; Opt.latetouch = False; Opt.dsp = 4; Opt.only = None; Opt.dbgwg = 200; Opt.kvfront = True; Opt.spec = False; Opt.ackstamp = False; Opt.wq1 = 16; Opt.wstlb = 0; Opt.pad = 0; Opt.x2step = True; Opt.pm_sleep = 0; Opt.bias = 98.0; Opt.thr = 0; Opt.stsc = ' sc1'; Opt.ldsc = ' sc1'; Opt.plsc = 'atomic'
    for k, v in kw.items():
        setattr(Opt, k, v)
    K = main_kernel()
    K.L = fix_hazards(K.L)
    bad = check_hazards(K.L)
    kn = NAME + "_kernel"
    txt = HEAD
    txt += f"; @launch grid=(256,1,1) block=(256,1,1) lds={LDS_BYTES}\n"
    txt += '.amdgcn_target "amdgcn-amd-amdhsa--gfx950"\n.text\n'
    txt += f".globl {kn}\n.p2align 8\n.type {kn},@function\n{kn}:\n" + K.text()
    txt += '.section .rodata,"a"\n.p2align 6\n' + kd(kn, 512, 256)
    open(path, "w").write(txt)
    if stamps:
        open(path + ".stamps", "w").write("\n".join(Opt.stamp_names))
    print(path, "bytes", len(txt), "instr", len(K.L), "hazards", len(bad))
    return bad


if __name__ == "__main__":
    build("k_plain.s")
    build("k_dump.s", dump=True, a=0, p2=WS_P2)
    only = ["start", "ln1", "qproj", "attn_epi", "wo", "sig0", "poll1", "sig1", "poll2", "ffn1", "ffn2", "sig2", "poll3", "end"]
    build(f"k_p0.s", stamps=True, only=only)
    build(f"k_p1.s", stamps=True, only=only, wo2=False)
    build(f"k_p2.s", stamps=True, only=only, wost=(9, 10))
```
